```python
import torch

def _softmax(x, axis=-1):
    return torch.softmax(x, dim=axis)
def _gelu(x):
    return torch.nn.functional.gelu(x, approximate="tanh")
def _silu(x):
    return torch.nn.functional.silu(x)
def _sigmoid(x):
    return torch.sigmoid(x)
def _layernorm(x, axis=-1, eps=1e-5):
    m = x.mean(dim=axis, keepdim=True)
    v = x.var(dim=axis, keepdim=True, unbiased=False)
    return (x - m) / torch.sqrt(v + eps)
def _scatter_add(tgt, idx, src, axis=0):
    return tgt.clone().index_add_(axis, idx, src)
def _segment_sum(src, seg, n):
    out = torch.zeros((n,) + src.shape[1:], dtype=src.dtype)
    return out.index_add_(0, seg, src)
def _pad(x, pw):
    flat = tuple(v for pair in reversed(pw) for v in pair)
    return torch.nn.functional.pad(x, flat)

kernel_name = 'parallel_sum__linear_kernel_hedgehog__mixer_token_mlp__prompt'

def setup_inputs():

    _w = (lambda a: (lambda t: t.to(torch.bfloat16) if t.is_floating_point() else t)(torch.as_tensor(a)))
    def _A_setup():
        B, S, D, H = 1, 2048, 640, 32
        Dh = D // H
        return {
            "x": _w((lambda *s: torch.randn(*s, dtype=torch.bfloat16) * 0.05)(B, S, D)),
            "wqkv": _w((lambda *s: torch.randn(*s, dtype=torch.bfloat16) * 0.2)(D, 3 * D)),
            "w_phi": _w((lambda *s: torch.randn(*s, dtype=torch.bfloat16) * 0.2)(H, Dh, Dh) * (Dh ** -0.5)),
            "wo": _w((lambda *s: torch.randn(*s, dtype=torch.bfloat16) * 0.05)(D, D)),
        }
    _A_in = _A_setup()

    def _B_setup():
        B, S, D, F = 1, 2048, 640, 1728
        return {
            "x": _w((lambda *s: torch.randn(*s, dtype=torch.bfloat16) * 0.05)(B, S, D)),
            "w1": _w((lambda *s: torch.randn(*s, dtype=torch.bfloat16) * 0.8)(S, F) * (S ** -0.5)),
            "b1": _w((lambda *s: torch.randn(*s, dtype=torch.bfloat16) * 12.8)(F) * 0.02),
            "w2": _w((lambda *s: torch.randn(*s, dtype=torch.bfloat16) * 0.1)(F, S) * (F ** -0.5)),
            "b2": _w((lambda *s: torch.randn(*s, dtype=torch.bfloat16) * 1.6)(S) * 0.02),
        }
    _B_in = _B_setup()

    return {
        "A_x": _A_in["x"],
        "A_wqkv": _A_in["wqkv"],
        "A_w_phi": _A_in["w_phi"],
        "A_wo": _A_in["wo"],
        "B_x": _B_in["x"],
        "B_w1": _B_in["w1"],
        "B_b1": _B_in["b1"],
        "B_w2": _B_in["w2"],
        "B_b2": _B_in["b2"],
    }

def reference(A_x, A_wqkv, A_w_phi, A_wo, B_x, B_w1, B_b1, B_w2, B_b2):
    def _A_ref(x, wqkv, w_phi, wo):
        B, S, D = x.shape
        H = 32; Dh = D // H
        qkv = (lambda x, *d: x.permute(*d))((x @ wqkv).reshape(B, S, 3, H, Dh), 2, 0, 3, 1, 4)
        q, k, v = qkv[0], qkv[1], qkv[2]
        pq = torch.einsum("bhsd,hdf->bhsf", q, w_phi)
        pk = torch.einsum("bhsd,hdf->bhsf", k, w_phi)
        phi_q = torch.concatenate([_softmax(pq, axis=-1), _softmax(-pq, axis=-1)], axis=-1)
        phi_k = torch.concatenate([_softmax(pk, axis=-1), _softmax(-pk, axis=-1)], axis=-1)
        kv = torch.einsum("bhsf,bhsd->bhfd", phi_k, v)
        z  = torch.einsum("bhsf->bhf", phi_k)
        num = torch.einsum("bhqf,bhfd->bhqd", phi_q, kv)
        den = torch.einsum("bhqf,bhf->bhq", phi_q, z)[..., None] + 1e-6
        o = num / den
        return (lambda x, *d: x.permute(*d))(o, 0, 2, 1, 3).reshape(B, S, D) @ wo

    def _B_ref(x, w1, b1, w2, b2):
        B, S, D = x.shape
        h = _layernorm(x, axis=-1)
        u = torch.einsum("bsd,sf->bdf", h, w1) + b1
        u = _gelu(u)
        y = torch.einsum("bdf,fs->bds", u, w2) + b2
        return (lambda x, *d: x.permute(*d))(y, 0, 2, 1)

    x = A_x
    xn = _layernorm(x, axis=-1)
    return x + _A_ref(xn, A_wqkv, A_w_phi, A_wo) + _B_ref(xn, B_w1, B_b1, B_w2, B_b2)
```

```python
import re

_REG = re.compile(r"^(-|abs\()?([vas])(\d+)\)?$")
_RNG = re.compile(r"^(-)?([vas])\[(\d+):(\d+)\]$")

def parse_regs(op):
    op = op.strip()
    m = _RNG.match(op)
    if m:
        return [(m.group(2), i) for i in range(int(m.group(3)), int(m.group(4)) + 1)]
    m = _REG.match(op)
    if m:
        return [(m.group(2), int(m.group(3)))]
    if op == "vcc": return [("s", "vcc_lo"), ("s", "vcc_hi")]
    if op in ("vcc_lo", "vcc_hi", "m0", "exec_lo", "exec_hi"): return [("s", op)]
    if op == "exec": return [("s", "exec_lo"), ("s", "exec_hi")]
    return []

TRANS = ("v_exp_f32", "v_log_f32", "v_rcp_f32", "v_rsq_f32", "v_sqrt_f32", "v_sin_f32", "v_cos_f32", "v_rcp_iflag_f32")

class Ins:
    __slots__ = ("text", "mn", "cls", "dst", "src", "srcc", "ab", "passes", "ws", "stdata", "dpp")
    def __init__(self, text):
        self.text = text
        t = text.split(";")[0].strip()
        parts = t.split(None, 1)
        mn = parts[0]; self.mn = mn
        rest = parts[1] if len(parts) > 1 else ""
        ops = [o.strip() for o in rest.split(",")] if rest else []
        mods = ""
        if ops:
            last = ops[-1].split(None, 1)
            ops[-1] = last[0]
            mods = last[1] if len(last) > 1 else ""
        self.dst = []; self.src = []; self.srcc = []; self.ab = []; self.passes = 0; self.ws = 1; self.stdata = []
        self.dpp = ("row_" in mods) or ("quad_perm" in mods) or ("wave_" in mods) or mn.endswith("_dpp")
        R = [parse_regs(o) for o in ops]
        if mn == "s_nop":
            self.cls = "nop"; self.ws = int(ops[0], 0) + 1
        elif mn.startswith("v_mfma"):
            self.cls = "mfma"; self.dst = R[0]; self.ab = R[1] + R[2]; self.srcc = R[3]; self.src = self.ab + self.srcc
            self.passes = 8 if "32x32" in mn else 4
        elif mn.startswith("v_cmp"):
            self.cls = "valu"; self.dst = R[0]; self.src = sum(R[1:], [])
        elif mn.startswith("v_readfirstlane") or mn.startswith("v_readlane"):
            self.cls = "valu"; self.dst = R[0]; self.src = sum(R[1:], [])
        elif mn.startswith("v_permlane") and "swap" in mn:
            self.cls = "valu"; self.dst = R[0] + R[1]; self.src = R[0] + R[1]
        elif mn.startswith("v_"):
            self.cls = "valu"; self.dst = R[0]; self.src = sum(R[1:], [])
            if mn.startswith(("v_add_co", "v_sub_co", "v_addc_co", "v_subb_co")):
                self.dst = R[0] + R[1]; self.src = sum(R[2:], [])
            if mn.startswith(("v_fmac", "v_dot2c", "v_pk_fmac", "v_writelane")) or self.dpp:
                self.src = self.src + R[0]
            if mn.startswith("v_cndmask") and len(ops) == 3:
                self.src += parse_regs("vcc")
        elif mn.startswith(("buffer_load", "global_load")):
            self.cls = "vmem"
            if " lds" in (" " + mods) or "_lds_" in mn:
                self.src = sum(R, []) + [("s", "m0")]; self.cls = "vmem"; self.mn = mn + "#lds"
            else:
                self.dst = R[0]; self.src = sum(R[1:], [])
        elif mn.startswith(("buffer_store", "buffer_atomic")):
            self.cls = "vmem"; self.src = sum(R, []); self.stdata = R[0] if ("x3" in mn or "x4" in mn) else []
        elif mn.startswith(("global_store", "global_atomic")):
            self.cls = "vmem"; self.src = sum(R, []); self.stdata = R[1] if ("x3" in mn or "x4" in mn) else []
        elif mn.startswith("ds_read") or mn.startswith("ds_bpermute") or mn.startswith("ds_swizzle") or mn.startswith("ds_permute"):
            self.cls = "ds"; self.dst = R[0]; self.src = sum(R[1:], [])
        elif mn.startswith("ds_"):
            self.cls = "ds"; self.src = sum(R, [])
        elif mn.startswith(("s_load", "s_buffer_load", "s_memtime", "s_memrealtime")):
            self.cls = "smem"; self.dst = R[0]; self.src = sum(R[1:], [])
        elif mn.startswith(("s_cmp", "s_cbranch", "s_branch", "s_waitcnt", "s_barrier", "s_endpgm", "s_setprio", "s_sleep", "s_bitcmp")):
            self.cls = "salu"; self.src = sum(R, [])
        elif mn.startswith("s_"):
            self.cls = "salu"; self.dst = R[0] if R else []; self.src = sum(R[1:], [])
            if "saveexec" in mn: self.dst = self.dst + parse_regs("exec")
        else:
            raise ValueError("unknown instruction: " + text)

def need_ws(p, c):
    n = 0
    pd = set(p.dst)
    if p.cls == "valu":
        vd = {r for r in pd if r[0] in "va"}; sd = {r for r in pd if r[0] == "s"}
        if c.cls == "mfma" and vd & set(c.src): n = max(n, 2)
        if c.cls == "valu":
            if c.mn.startswith(("v_readfirstlane", "v_readlane")) and vd & set(c.src): n = max(n, 1)
            if c.mn.startswith("v_permlane") and vd & set(c.src): n = max(n, 2)
            if c.dpp and vd & set(c.src): n = max(n, 2)
            if p.mn.startswith(TRANS) and not c.mn.startswith(TRANS) and vd & set(c.src): n = max(n, 1)
            if sd & set(c.src): n = max(n, 4 if c.mn.startswith(("v_readlane", "v_writelane", "v_div_fmas")) else 2)
            if ("op_sel" in p.text or "sdwa" in p.text) and vd & (set(c.src) | set(c.dst)): n = max(n, 1)
        if c.cls == "vmem" and sd & set(c.src): n = max(n, 5)
        if c.cls == "salu" and sd & set(c.src): n = max(n, 1)
    if p.cls == "mfma":
        big = {4: 8, 8: 12}[p.passes]; ov = {4: 6, 8: 10}[p.passes]; war = {4: 3, 8: 7}[p.passes]
        if c.cls == "mfma":
            if pd & set(c.ab): n = max(n, big)
            if pd & set(c.srcc) and not (c.srcc == p.dst and c.passes == p.passes): n = max(n, ov)
            if pd & set(c.dst) and not (c.srcc == p.dst and c.dst == p.dst and c.passes == p.passes): n = max(n, ov)
        elif c.cls in ("valu", "vmem", "ds"):
            if pd & (set(c.src) | set(c.dst)): n = max(n, big)
            if c.cls == "valu" and set(p.srcc) & set(c.dst): n = max(n, war)
    if p.cls == "salu" and ("s", "m0") in pd and c.mn.endswith("#lds"): n = max(n, 1)
    if p.stdata and set(p.stdata) & set(c.dst): n = max(n, 2)
    return n

class Asm:
    def __init__(self):
        self.lines = []
        self.launches = []
        self.kernels = []
        self._lab = 0
        self.hist = []
        self.vmq = []
        self.lgq = []
        self.nops = 0
        self.ninstr = 0
    def raw(self, s): self.lines.append(s)
    def comment(self, s): self.lines.append("    ; " + s)
    def __call__(self, s, vm=None, lg=None):
        for l in s.split("\n"):
            l = l.strip()
            if not l: continue
            if l.startswith(";"): self.lines.append("    " + l); continue
            if l.endswith(":"):
                self.lines.append(l)
                continue
            ins = Ins(l)
            dist = 0; need = 0
            for p in reversed(self.hist):
                w = need_ws(p, ins)
                if w - dist > need: need = w - dist
                dist += p.ws
                if dist >= 20: break
            while need > 0:
                k = min(need, 16)
                nop = Ins(f"s_nop {k-1}")
                self.lines.append(f"    s_nop {k-1}"); self.hist.append(nop); need -= k; self.nops += 1
            self.lines.append("    " + l)
            self.hist.append(ins); self.ninstr += 1
            if len(self.hist) > 40: self.hist = self.hist[-40:]
            if ins.cls == "vmem": self.vmq.append(vm)
            if ins.cls == "ds": self.lgq.append(lg)
            if ins.mn == "s_waitcnt":
                m = re.search(r"vmcnt\((\d+)\)", l)
                if m:
                    n = int(m.group(1)); self.vmq = self.vmq[len(self.vmq) - n:] if n else []
                m = re.search(r"lgkmcnt\((\d+)\)", l)
                if m:
                    n = int(m.group(1)); self.lgq = self.lgq[len(self.lgq) - n:] if n else []
    def _cnt(self, q, tag):
        idx = [i for i, t in enumerate(q) if t == tag]
        if not idx: return None
        return len(q) - 1 - idx[-1]
    def wait(self, vm=None, lg=None):
        parts = []
        if vm is not None:
            n = self._cnt(self.vmq, vm)
            if n is not None: parts.append(f"vmcnt({min(n,63)})")
        if lg is not None:
            n = self._cnt(self.lgq, lg)
            if n is not None: parts.append(f"lgkmcnt({min(n,15)})")
        if parts: self("s_waitcnt " + " ".join(parts))
    def fence(self, n=16):
        self(f"s_nop {n-1}")
    def label(self, base="L"):
        self._lab += 1
        return f"{base}_{self._lab}"
    def begin_kernel(self, name):
        self.lines += [f".globl {name}", ".p2align 8", f".type {name},@function", f"{name}:"]
        self.hist = []; self.vmq = []; self.lgq = []
    def end_kernel(self, name, vgpr, sgpr=102, accum=None):
        if accum is None: accum = min(256, (vgpr + 3) // 4 * 4)
        self.kernels.append((name, vgpr, sgpr, accum))
    def launch(self, name, grid, block, lds):
        self.launches.append(f"; @launch kernel={name} grid=({grid},1,1) block=({block},1,1) lds={lds}")
    def text(self, header=""):
        out = []
        if header: out += ["; " + h for h in header.split("\n")]
        out += self.launches
        out += ['.amdgcn_target "amdgcn-amd-amdhsa--gfx950"', ".text"]
        out += self.lines
        out += ['.section .rodata,"a"']
        for (name, vgpr, sgpr, accum) in self.kernels:
            out += [".p2align 6", f".amdhsa_kernel {name}",
                    f"  .amdhsa_next_free_vgpr {vgpr}", f"  .amdhsa_next_free_sgpr {sgpr}",
                    f"  .amdhsa_accum_offset {accum}", "  .amdhsa_group_segment_fixed_size 0",
                    "  .amdhsa_kernarg_size 96", "  .amdhsa_user_sgpr_count 2",
                    "  .amdhsa_user_sgpr_kernarg_segment_ptr 1", "  .amdhsa_system_sgpr_workgroup_id_x 1",
                    "  .amdhsa_float_denorm_mode_32 3",
                    ".end_amdhsa_kernel"]
        return "\n".join(out) + "\n"
```

```python
import sys
from asmlib import Asm

HT_OFF  = 0
HT_SZ   = 8*64*5*1024
PQ_OFF  = HT_OFF + HT_SZ
PQ_SZ   = 32*5*2048*8
KVP_OFF = PQ_OFF + PQ_SZ
KVP_SZ  = 32*32*3360
U_OFF   = KVP_OFF + KVP_SZ + 4096
U_SZ    = 8*54*5*1024
O_OFF   = U_OFF + U_SZ
O_SZ    = 32*20*4*1024
WOT_OFF = O_OFF + O_SZ
WOT_SZ  = 8*20*5*1024
WS_USED = WOT_OFF + WOT_SZ
BIG = 0x7f000000

def vr(b, n=1): return f"v{b}" if n == 1 else f"v[{b}:{b+n-1}]"
def ar(b, n=1): return f"a{b}" if n == 1 else f"a[{b}:{b+n-1}]"
def sr(b, n=1): return f"s{b}" if n == 1 else f"s[{b}:{b+n-1}]"

P_X, P_WQKV, P_WPHI, P_WO, P_W1, P_B1, P_W2, P_B2, P_OUT, P_DBG, P_WS = 64, 66, 68, 70, 74, 76, 78, 80, 82, 84, 86

def load_kernargs(a):
    a("s_load_dwordx16 s[64:79], s[0:1], 0\ns_load_dwordx8 s[80:87], s[0:1], 64")

def srd(a, d, ptr, nbytes, off=None):
    if off is None:
        a(f"s_mov_b32 s{d}, s{ptr}\ns_mov_b32 s{d+1}, s{ptr+1}")
    else:
        a(f"s_add_u32 s{d}, s{ptr}, {off}\ns_addc_u32 s{d+1}, s{ptr+1}, 0")
    a(f"s_mov_b32 s{d+2}, {nbytes}\ns_mov_b32 s{d+3}, 0x20000")

LOG2E = 1.4426950408889634
import struct
def fbits(x): return "0x%08x" % struct.unpack("<I", struct.pack("<f", x))[0]

def softmax_dual(a, P, E, T, OUT, sL2E):
    mx, mn, nmx, s1, s2, t = T, T+1, T+2, T+3, T+4, T+5
    a(f"v_max3_f32 v{mx}, v{P}, v{P+1}, v{P+2}")
    a(f"v_min3_f32 v{mn}, v{P}, v{P+1}, v{P+2}")
    for i in range(3, 19, 2):
        a(f"v_max3_f32 v{mx}, v{mx}, v{P+i}, v{P+i+1}")
        a(f"v_min3_f32 v{mn}, v{mn}, v{P+i}, v{P+i+1}")
    a(f"v_max_f32 v{mx}, v{mx}, v{P+19}")
    a(f"v_min_f32 v{mn}, v{mn}, v{P+19}")
    a(f"v_mul_f32 v{nmx}, s{sL2E}, v{mx}")
    a(f"v_mul_f32 v{mn}, s{sL2E}, v{mn}")
    for i in range(20):
        a(f"v_fma_f32 v{E+i}, v{P+i}, s{sL2E}, -v{nmx}")
        a(f"v_fma_f32 v{E+20+i}, -v{P+i}, s{sL2E}, v{mn}")
    for i in range(40):
        a(f"v_exp_f32 v{E+i}, v{E+i}")
    a(f"v_add_f32 v{s1}, v{E}, v{E+1}")
    a(f"v_add_f32 v{s2}, v{E+20}, v{E+21}")
    for i in range(2, 20):
        a(f"v_add_f32 v{s1}, v{s1}, v{E+i}")
        a(f"v_add_f32 v{s2}, v{s2}, v{E+20+i}")
    a(f"v_rcp_f32 v{s1}, v{s1}")
    a(f"v_rcp_f32 v{s2}, v{s2}")
    for i in range(20):
        a(f"v_mul_f32 v{E+i}, v{E+i}, v{s1}")
        a(f"v_mul_f32 v{E+20+i}, v{E+20+i}, v{s2}")
    for i in range(20):
        a(f"v_cvt_pk_bf16_f32 v{OUT+i}, v{E+2*i}, v{E+2*i+1}")

def gen_k0(a, opt):
    name = "k0_kernel"
    a.launch(name, 256, 256, 163840)
    a.begin_kernel(name)
    STG = 15360; NSLOT = 10; HS = 153600
    xfl = opt.get("k0_xflag", ""); wfl = opt.get("k0_wflag", "")
    SX, SW, SPHI, SWS = 8, 12, 16, 20
    sW, sRT, sG, sROT, sT0, sT1, sT2, sKB, sMASK, sL2E, sWOFF, sSLOT = 24, 25, 26, 27, 28, 29, 30, 31, 32, 34, 35, 36
    vLANE, vQ, vN, vXO, vWO, vTR, vT0, vT1, vT2, vT3, vONE = 1, 2, 3, 4, 5, 6, 7, 8, 9, 10, 12
    vST = 16
    XF = 32
    ACC = 112
    WF = 172
    HX = 204
    TMP = 216
    a(f"s_cmp_ge_u32 s2, 256\ns_cbranch_scc1 K0_end")
    load_kernargs(a)
    a(f"""
    v_and_b32 v{vLANE}, 63, v0
    v_lshrrev_b32 v{vT0}, 6, v0
    v_lshrrev_b32 v{vQ}, 4, v{vLANE}
    v_readfirstlane_b32 s{sW}, v{vT0}
    v_and_b32 v{vN}, 15, v{vLANE}
    s_and_b32 s{sT0}, s2, 7
    s_lshr_b32 s{sT1}, s2, 3
    s_lshr_b32 s{sRT}, s{sT0}, 1
    s_lshl_b32 s{sRT}, s{sRT}, 3
    s_lshr_b32 s{sT2}, s{sT1}, 2
    s_add_u32 s{sRT}, s{sRT}, s{sT2}
    s_and_b32 s{sG}, s{sT0}, 1
    s_lshl_b32 s{sG}, s{sG}, 2
    s_and_b32 s{sT1}, s{sT1}, 3
    s_add_u32 s{sG}, s{sG}, s{sT1}
    s_mul_i32 s{sROT}, s{sT2}, 5
    s_lshr_b32 s{sROT}, s{sROT}, 1
    s_mov_b32 s{sMASK}, -1
    s_mov_b32 s{sMASK+1}, 0x0fffffff
    s_mov_b32 s{sL2E}, {fbits(LOG2E)}
    ; x voffset = n*1280 + q*16
    v_mul_u32_u24 v{vXO}, 1280, v{vN}
    v_lshl_add_u32 v{vXO}, v{vQ}, 4, v{vXO}
    ; W dma voffset: lane<60: r=lane/30, c=lane%30, sec=c/10, cc=c%10 -> r*3840 + sec*1280 + cc*16
    v_cmp_le_u32 vcc, 30, v{vLANE}
    v_mov_b32 v{vT0}, 0
    v_mov_b32 v{vT1}, 30
    v_cndmask_b32 v{vT1}, v{vT0}, v{vT1}, vcc
    v_sub_u32 v{vT2}, v{vLANE}, v{vT1}
    v_mul_u32_u24 v{vWO}, 128, v{vT1}
    v_mul_u32_u24 v{vT3}, 26, v{vT2}
    v_lshrrev_b32 v{vT3}, 8, v{vT3}
    v_mul_u32_u24 v{vT0}, 1120, v{vT3}
    v_lshl_add_u32 v{vT0}, v{vT2}, 4, v{vT0}
    v_add_u32 v{vWO}, v{vWO}, v{vT0}
    s_waitcnt lgkmcnt(0)
    """)
    srd(a, SX, P_X, 2048*1280)
    srd(a, SW, P_WQKV, 640*3840)
    srd(a, SPHI, P_WPHI, 32*800)
    srd(a, SWS, P_WS, WS_USED)
    a(f"s_lshl_b32 s{sT0}, s{sRT}, 2\ns_add_u32 s{sT0}, s{sT0}, s{sW}\ns_mul_i32 s{sT0}, s{sT0}, {16*1280}")
    a(f"s_mov_b32 s{sKB}, s{sROT}")
    for i in range(20):
        a(f"s_lshl_b32 s{sT1}, s{sKB}, 6\ns_add_u32 s{sT1}, s{sT1}, s{sT0}")
        a(f"buffer_load_dwordx4 {vr(XF+4*i,4)}, v{vXO}, {sr(SX,4)}, s{sT1} offen {xfl}", vm=f"x{i}")
        a(f"s_add_u32 s{sKB}, s{sKB}, 1\ns_cmp_eq_u32 s{sKB}, 20\ns_cselect_b32 s{sKB}, 0, s{sKB}")
    a(f"v_mul_u32_u24 v{vT0}, 1280, v{vN}\nv_mul_u32_u24 v{vT1}, 40, v{vQ}\nv_add_u32 v{vT0}, v{vT0}, v{vT1}")
    a(f"s_mul_i32 s{sT1}, s{sG}, 160\ns_add_u32 s{sT1}, s{sT1}, s{sT0}")
    a(f"buffer_load_dwordx4 {vr(HX,4)}, v{vT0}, {sr(SX,4)}, s{sT1} offen", vm="hx")
    a(f"buffer_load_dwordx4 {vr(HX+4,4)}, v{vT0}, {sr(SX,4)}, s{sT1} offen offset:16", vm="hx")
    a(f"buffer_load_dwordx2 {vr(HX+8,2)}, v{vT0}, {sr(SX,4)}, s{sT1} offen offset:32", vm="hx")
    a(f"""
    s_and_b32 s{sT1}, s{sW}, 1
    s_lshl_b32 s{sT1}, s{sT1}, 4
    s_lshr_b32 s{sT2}, s{sW}, 1
    s_lshl_b32 s{sT2}, s{sT2}, 2
    s_add_u32 s{sT1}, s{sT1}, s{sT2}
    s_mul_i32 s{sWOFF}, s{sT1}, 3840
    s_mul_i32 s{sT1}, s{sG}, 160
    s_add_u32 s{sWOFF}, s{sWOFF}, s{sT1}
    s_mul_i32 s{sSLOT}, s{sW}, 3840
    s_mov_b32 s{sKB}, s{sROT}
    """)
    def dma_stage(s):
        slot = s % NSLOT
        a(f"s_mul_i32 s{sT1}, s{sKB}, {32*3840}\ns_add_u32 s{sT1}, s{sT1}, s{sWOFF}")
        a(f"s_mov_b64 exec, {sr(sMASK,2)}")
        for ii in range(4):
            a(f"s_add_u32 m0, s{sSLOT}, {slot*STG + ii*960}")
            ro = (8*(ii >> 1) + 2*(ii & 1)) * 3840
            if ro: a(f"s_add_u32 s{sT2}, s{sT1}, {ro}")
            a(f"buffer_load_dwordx4 v{vWO}, {sr(SW,4)}, s{sT2 if ro else sT1} offen {wfl} lds", vm=f"w{s}")
        a("s_mov_b64 exec, -1")
        a(f"s_add_u32 s{sKB}, s{sKB}, 1\ns_cmp_eq_u32 s{sKB}, 20\ns_cselect_b32 s{sKB}, 0, s{sKB}")
    for s in range(NSLOT): dma_stage(s)
    a(f"""
    v_lshrrev_b32 v{vT0}, 2, v{vN}
    v_lshl_add_u32 v{vT0}, v{vQ}, 2, v{vT0}
    v_mul_u32_u24 v{vTR}, 480, v{vT0}
    v_and_b32 v{vT1}, 3, v{vN}
    v_mul_u32_u24 v{vT1}, 40, v{vT1}
    v_add_u32 v{vTR}, v{vTR}, v{vT1}
    v_mov_b32 v{vONE}, 0x3f803f80
    v_mov_b32 v{vONE+1}, 0x3f803f80
    v_mov_b32 v{vONE+2}, 0x3f803f80
    v_mov_b32 v{vONE+3}, 0x3f803f80
    """)
    for i in range(8): a(f"v_mov_b32 v{vST+i}, 0")
    for i in range(60): a(f"v_mov_b32 v{ACC+i}, 0")
    for i in range(20):
        a.wait(vm=f"x{i}")
        a(f"v_mfma_f32_16x16x32_bf16 {vr(vST,4)}, {vr(vONE,4)}, {vr(XF+4*i,4)}, {vr(vST,4)}")
        a(f"v_mfma_f32_16x16x32_bf16 {vr(vST+4,4)}, {vr(XF+4*i,4)}, {vr(XF+4*i,4)}, {vr(vST+4,4)}")
    a(f"""
    v_and_b32 v{vT0}, 3, v{vN}
    v_lshrrev_b32 v{vT1}, 2, v{vN}
    v_cmp_eq_u32 vcc, 1, v{vT0}
    v_cndmask_b32 v{vT2}, v{vST+4}, v{vST+5}, vcc
    v_cmp_eq_u32 vcc, 2, v{vT0}
    v_cndmask_b32 v{vT2}, v{vT2}, v{vST+6}, vcc
    v_cmp_eq_u32 vcc, 3, v{vT0}
    v_cndmask_b32 v{vT2}, v{vT2}, v{vST+7}, vcc
    v_cmp_eq_u32 vcc, v{vT1}, v{vQ}
    v_mov_b32 v{vT3}, 0
    v_cndmask_b32 v{vT2}, v{vT3}, v{vT2}, vcc
    v_mov_b32 v{vT3}, v{vT2}
    v_permlane16_swap_b32 v{vT2}, v{vT3}
    v_add_f32 v{vT2}, v{vT2}, v{vT3}
    v_mov_b32 v{vT3}, v{vT2}
    v_permlane32_swap_b32 v{vT2}, v{vT3}
    v_add_f32 v{vT2}, v{vT2}, v{vT3}
    v_mul_f32 v{vT0}, {fbits(1.0/640)}, v{vST}
    v_mul_f32 v{vT2}, {fbits(1.0/640)}, v{vT2}
    v_fma_f32 v{vT2}, -v{vT0}, v{vT0}, v{vT2}
    v_max_f32 v{vT2}, 0, v{vT2}
    v_add_f32 v{vT1}, {fbits(1e-5)}, v{vT2}
    v_rsq_f32 v{vST+8}, v{vT1}
    v_mul_f32 v{vT3}, v{vST+8}, v{vST+8}
    v_mul_f32 v{vST+9}, v{vT0}, v{vST+8}
    v_sub_f32 v{vST+9}, 0, v{vST+9}
    v_mul_f32 v{vT3}, v{vT3}, v{vT2}
    v_add_f32 v{vT3}, {fbits(1e-5)}, v{vT3}
    v_rsq_f32 v{vT3}, v{vT3}
    v_mul_f32 v{vST+10}, v{vST+8}, v{vT3}
    v_mul_f32 v{vST+11}, v{vST+9}, v{vT3}
    """)
    def normalize(reg, cpair, t):
        a(f"v_lshlrev_b32 v{t}, 16, v{reg}")
        a(f"v_and_b32 v{t+1}, 0xffff0000, v{reg}")
    def norm_list(regs, cpair):
        G = 4
        for b in range(0, len(regs), G):
            grp = regs[b:b+G]
            for k, r in enumerate(grp):
                a(f"v_lshlrev_b32 v{TMP+2*k}, 16, v{r}")
                a(f"v_and_b32 v{TMP+2*k+1}, 0xffff0000, v{r}")
            for k, r in enumerate(grp):
                a(f"v_pk_fma_f32 {vr(TMP+2*k,2)}, {vr(TMP+2*k,2)}, {vr(cpair,2)}, {vr(cpair,2)} op_sel:[0,0,1] op_sel_hi:[1,0,1]")
            for k, r in enumerate(grp):
                a(f"v_cvt_pk_bf16_f32 v{r}, v{TMP+2*k}, v{TMP+2*k+1}")
    norm_list([XF+i for i in range(80)], vST+8)
    a.wait(vm="hx")
    norm_list([HX+i for i in range(10)], vST+10)
    a(f"""
    s_mul_i32 s{sT1}, s{sW}, 2560
    s_add_u32 s{sT1}, s{sT1}, {HS}
    v_mul_u32_u24 v{vT0}, 160, v{vN}
    v_mul_u32_u24 v{vT1}, 40, v{vQ}
    v_add3_u32 v{vT0}, v{vT0}, v{vT1}, s{sT1}
    """)
    for i in range(5): a(f"ds_write_b64 v{vT0}, {vr(HX+2*i,2)} offset:{8*i}", lg="hs")
    a("s_waitcnt lgkmcnt(0)")
    NF = 300; AHEAD = 6; RING = 8
    vTRs = TMP + 10
    def stage_enter(s):
        a.wait(vm=f"w{s}")
        a("s_barrier")
        a(f"v_add_u32 v{vTRs + (s&1)}, {(s % NSLOT)*STG}, v{vTR}")
        if 2 <= s and s + 8 < 20: dma_stage(s + 8)
        if s == 1:
            a(f"""
            s_and_b32 s{sT1}, s{sW}, 1
            s_mul_i32 s{sT2}, s{sT1}, 5120
            s_lshr_b32 s{sT0}, s{sW}, 1
            s_mul_i32 s{sT0}, s{sT0}, 24
            s_add_u32 s{sT2}, s{sT2}, s{sT0}
            s_add_u32 s{sT2}, s{sT2}, {HS}
            v_lshrrev_b32 v{vT0}, 2, v{vN}
            v_lshl_add_u32 v{vT0}, v{vQ}, 2, v{vT0}
            v_mul_u32_u24 v{vT0}, 160, v{vT0}
            v_and_b32 v{vT1}, 3, v{vN}
            v_mul_u32_u24 v{vT1}, 40, v{vT1}
            v_add3_u32 v{vT0}, v{vT0}, v{vT1}, s{sT2}
            """)
            for i in range(3):
                for hh in range(2):
                    a(f"ds_read_b64_tr_b16 {vr(TMP+16+4*i+2*hh,2)}, v{vT0} offset:{8*i + hh*2560}", lg="ht")
        if s == 2:
            a(f"""
            s_lshl_b32 s{sT0}, s{sG}, 6
            s_lshl_b32 s{sT1}, s{sRT}, 1
            s_add_u32 s{sT0}, s{sT0}, s{sT1}
            s_and_b32 s{sT1}, s{sW}, 1
            s_add_u32 s{sT0}, s{sT0}, s{sT1}
            s_mul_i32 s{sT0}, s{sT0}, 5
            s_lshr_b32 s{sT1}, s{sW}, 1
            s_mul_i32 s{sT2}, s{sT1}, 3
            s_add_u32 s{sT0}, s{sT0}, s{sT2}
            s_lshl_b32 s{sT0}, s{sT0}, 10
            s_add_u32 s{sT0}, s{sT0}, {HT_OFF}
            s_mul_i32 s{sT1}, s{sT1}, {BIG}
            v_lshlrev_b32 v{vT0}, 4, v{vLANE}
            v_add_u32 v{vT1}, s{sT1}, v{vT0}
            """)
            a(f"buffer_store_dwordx4 {vr(TMP+16,4)}, v{vT0}, {sr(SWS,4)}, s{sT0} offen", vm="st")
            a(f"buffer_store_dwordx4 {vr(TMP+20,4)}, v{vT0}, {sr(SWS,4)}, s{sT0} offen offset:1024", vm="st")
            a(f"buffer_store_dwordx4 {vr(TMP+24,4)}, v{vT1}, {sr(SWS,4)}, s{sT0} offen offset:2048", vm="st")
        if s == 12:
            a(f"""
            v_lshlrev_b32 v{vT0}, 4, v{vLANE}
            v_mov_b32 v{vT1}, {BIG}
            v_cmp_gt_u32 vcc, 50, v{vLANE}
            v_cndmask_b32 v{vT0}, v{vT1}, v{vT0}, vcc
            s_lshl_b32 s{sT0}, s{sG}, 2
            s_add_u32 s{sT0}, s{sT0}, s{sW}
            s_mul_i32 s{sT0}, s{sT0}, 800
            s_lshl_b32 m0, s{sW}, 10
            """)
            a(f"buffer_load_dwordx4 v{vT0}, {sr(SPHI,4)}, s{sT0} offen lds", vm="phi")
        if s == 19:
            pass
    def read_frag(F):
        s, idx = divmod(F, 15)
        if idx == 0: stage_enter(s)
        sec, t = divmod(idx, 5)
        b = WF + 4*(F % RING)
        for hh in range(2):
            a(f"ds_read_b64_tr_b16 {vr(b+2*hh,2)}, v{vTRs + (s&1)} offset:{hh*16*480 + sec*160 + t*8}", lg=f"f{F}")
    for F in range(AHEAD): read_frag(F)
    for F in range(NF):
        if F + AHEAD < NF: read_frag(F + AHEAD)
        s, idx = divmod(F, 15)
        a.wait(lg=f"f{F}")
        a(f"v_mfma_f32_16x16x32_bf16 {vr(ACC+4*idx,4)}, {vr(WF+4*(F%RING),4)}, {vr(XF+4*s,4)}, {vr(ACC+4*idx,4)}")
    a.wait(vm="phi")
    a("s_barrier")
    PA = XF
    QB = XF + 52
    KB_ = XF + 64
    a(f"""
    v_lshrrev_b32 v{vT0}, 2, v{vN}
    v_and_b32 v{vT1}, 3, v{vN}
    v_mul_u32_u24 v{vT0}, 40, v{vT0}
    v_lshl_add_u32 v{vT0}, v{vQ}, 10, v{vT0}
    v_cmp_eq_u32 vcc, v{vT1}, v{vQ}
    v_mov_b32 v{vT2}, 800
    """)
    for ec in range(5):
        a(f"v_add_u32 v{vT3}, {ec*160}, v{vT0}")
        a(f"v_cndmask_b32 v{TMP+ec}, v{vT2}, v{vT3}, vcc")
    for t in range(5):
        for ec in range(5):
            a(f"ds_read_b64_tr_b16 {vr(PA+10*t+2*ec,2)}, v{TMP+ec} offset:{8*t}", lg=f"pa{t}")
        if t == 2: a("s_waitcnt lgkmcnt(5)")
    for i in range(10):
        a(f"v_cvt_pk_bf16_f32 v{KB_+i}, v{ACC+20+2*i}, v{ACC+20+2*i+1}")
    for i in range(10):
        a(f"v_cvt_pk_bf16_f32 v{QB+i}, v{ACC+2*i}, v{ACC+2*i+1}")
    VB = WF
    for i in range(10):
        a(f"v_cvt_pk_bf16_f32 v{VB+i}, v{ACC+40+2*i}, v{ACC+40+2*i+1}")
    a(f"v_mov_b32 v{VB+10}, 0x3f80\nv_mov_b32 v{VB+11}, 0")
    a("s_waitcnt lgkmcnt(0)")
    PK = ACC + 20; PQ = ACC
    for (B, D) in ((KB_, PK), (QB, PQ)):
        for t in range(5):
            a(f"v_mfma_f32_16x16x32_bf16 {vr(D+4*t,4)}, {vr(PA+10*t,4)}, {vr(B,4)}, 0")
        for t in range(5):
            a(f"v_mfma_f32_16x16x32_bf16 {vr(D+4*t,4)}, {vr(PA+10*t+4,4)}, {vr(B+4,4)}, {vr(D+4*t,4)}")
        for t in range(5):
            a(f"v_mfma_f32_16x16x16_bf16 {vr(D+4*t,4)}, {vr(PA+10*t+8,2)}, {vr(B+8,2)}, {vr(D+4*t,4)}")
    REC = STG
    a(f"""
    s_mul_i32 s{sT0}, s{sW}, {16*144}
    s_add_u32 s{sT0}, s{sT0}, {REC}
    v_mul_u32_u24 v{vT0}, 9216, v{vQ}
    v_mul_u32_u24 v{vT1}, 144, v{vN}
    v_add3_u32 v{vT0}, v{vT0}, v{vT1}, s{sT0}
    """)
    for i in range(3):
        a(f"ds_write_b128 v{vT0}, {vr(VB+4*i,4)} offset:{80+16*i}", lg="rec")
    PHK = WF + 12
    softmax_dual(a, PK, TMP, vST, PHK, sL2E)
    for i in range(5):
        a(f"ds_write_b128 v{vT0}, {vr(PHK+4*i,4)} offset:{16*i}", lg="rec")
    for i in range(10):
        a(f"v_cvt_pk_bf16_f32 v{QB+i}, v{PQ+2*i}, v{PQ+2*i+1}")
    a(f"""
    s_mov_b32 s{sT1}, 81920
    v_mul_lo_u32 v{vT1}, v{vQ}, s{sT1}
    v_lshl_add_u32 v{vT1}, v{vN}, 3, v{vT1}
    s_mul_i32 s{sT0}, s{sG}, 327680
    s_lshl_b32 s{sT1}, s{sRT}, 2
    s_add_u32 s{sT1}, s{sT1}, s{sW}
    s_lshl_b32 s{sT1}, s{sT1}, 7
    s_add_u32 s{sT0}, s{sT0}, s{sT1}
    s_add_u32 s{sT0}, s{sT0}, {PQ_OFF}
    """)
    for t in range(5):
        a(f"buffer_store_dwordx2 {vr(QB+2*t,2)}, v{vT1}, {sr(SWS,4)}, s{sT0} offen", vm="st")
        if t < 4: a(f"s_add_u32 s{sT0}, s{sT0}, 16384")
    a("s_waitcnt lgkmcnt(0)\ns_barrier")
    a(f"""
    s_mul_i32 s{sT0}, s{sW}, 9216
    s_add_u32 s{sT0}, s{sT0}, {REC}
    v_lshrrev_b32 v{vT0}, 2, v{vN}
    v_lshl_add_u32 v{vT0}, v{vQ}, 2, v{vT0}
    v_mul_u32_u24 v{vT0}, 144, v{vT0}
    v_and_b32 v{vT2}, 3, v{vN}
    v_lshlrev_b32 v{vT2}, 3, v{vT2}
    v_add3_u32 v{vT0}, v{vT0}, v{vT2}, s{sT0}
    """)
    KA = XF; KBv = XF + 24; KD = ACC + 20
    for ks in range(2):
        for tm in range(3):
            for hh in range(2):
                a(f"ds_read_b64_tr_b16 {vr(KA+12*ks+4*tm+2*hh,2)}, v{vT0} offset:{(32*ks+16*hh)*144 + tm*32}", lg=f"kv{ks}")
        for tn in range(2):
            for hh in range(2):
                a(f"ds_read_b64_tr_b16 {vr(KBv+8*ks+4*tn+2*hh,2)}, v{vT0} offset:{(32*ks+16*hh)*144 + 80 + tn*32}", lg=f"kv{ks}")
    a(f"""
    v_mul_u32_u24 v{TMP}, 160, v{vN}
    v_lshl_add_u32 v{TMP}, v{vQ}, 4, v{TMP}
    v_mov_b32 v{vT2}, {BIG}
    v_cmp_gt_u32 vcc, 5, v{vN}
    v_cndmask_b32 v{TMP+1}, v{vT2}, v{TMP}, vcc
    v_cmp_gt_u32 vcc, 2, v{vQ}
    v_cndmask_b32 v{TMP+2}, v{vT2}, v{TMP}, vcc
    v_cndmask_b32 v{TMP+3}, v{vT2}, v{TMP+1}, vcc
    s_lshl_b32 s{sT0}, s{sG}, 2
    s_add_u32 s{sT0}, s{sT0}, s{sW}
    s_lshl_b32 s{sT0}, s{sT0}, 5
    s_add_u32 s{sT0}, s{sT0}, s{sRT}
    s_mul_i32 s{sT0}, s{sT0}, 3360
    s_add_u32 s{sT0}, s{sT0}, {KVP_OFF}
    """)
    for ks in range(2):
        a.wait(lg=f"kv{ks}")
        for tm in range(3):
            for tn in range(2):
                d = KD + 4*(tm*2+tn)
                c = "0" if ks == 0 else vr(d,4)
                a(f"v_mfma_f32_16x16x32_bf16 {vr(d,4)}, {vr(KA+12*ks+4*tm,4)}, {vr(KBv+8*ks+4*tn,4)}, {c}")
    for tm in range(3):
        for tn in range(2):
            d = KD + 4*(tm*2+tn)
            vo = TMP + (1 if tn else 0) + (2 if tm == 2 else 0)
            a(f"buffer_store_dwordx4 {vr(d,4)}, v{vo}, {sr(SWS,4)}, s{sT0} offen offset:{tn*2560 + tm*64}", vm="st")
    a("K0_end:\ns_endpgm")
    a.end_kernel(name, 256)

class Core:
    def __init__(self, a, D, RA, RB, vDMA, vFR, vTR, sLDS, mfma, wflag="", aflag=""):
        self.__dict__.update(locals())
    def issue(self, i, st):
        a = self.a; D = self.D; slot = i % D
        st["addr"]()
        if st["kind"] == "lds":
            a(f"s_add_u32 m0, s{self.sLDS}, {slot*4096}")
            for k in range(4):
                a(f"buffer_load_dwordx4 v{self.vDMA+k}, {sr(st['srdB'],4)}, s{st['offB']} offen offset:{1024*k} {self.wflag} lds", vm=f"s{i}")
        else:
            for k in range(4):
                a(f"buffer_load_dwordx4 {vr(self.RB+16*slot+4*k,4)}, v{self.vFR}, {sr(st['srdB'],4)}, s{st['offB']} offen offset:{1024*k}", vm=f"s{i}")
    def issueA(self, i, st, k):
        a = self.a; slot = i % self.D
        if k < 4:
            a(f"buffer_load_dwordx4 {vr(self.RA+20*slot+4*k,4)}, v{self.vFR}, {sr(st['srdA'],4)}, s{st['offA']} offen offset:{1024*k} {self.aflag}", vm=f"s{i}")
        else:
            a(f"buffer_load_dwordx4 {vr(self.RA+20*slot+16,4)}, v{self.vFR+1}, {sr(st['srdA'],4)}, s{st['offA']} offen {self.aflag}", vm=f"s{i}")
    def trreads(self, i):
        a = self.a; slot = i % self.D
        for u in range(4):
            for hh in range(2):
                a(f"ds_read_b64_tr_b16 {vr(self.RB+16*slot+4*u+2*hh,2)}, v{self.vTR+u} offset:{slot*4096 + hh*2048}", lg=f"t{i}")
    def run(self, steps, hook=None):
        a = self.a; D = self.D; n = len(steps)
        for i in range(min(D, n)):
            self.issue(i, steps[i])
            for k in range(5): self.issueA(i, steps[i], k)
        if hook: hook("after_prologue")
        a.wait(vm="s0")
        if steps[0]["kind"] == "lds": self.trreads(0)
        for i in range(n):
            if i + 1 < n:
                a.wait(vm=f"s{i+1}")
                if steps[i+1]["kind"] == "lds": self.trreads(i + 1)
            a.wait(lg=f"t{i}")
            slot = i % D
            nxt = steps[i + D] if i + D < n else None
            early = nxt is not None and nxt["kind"] == "lds"
            if early: self.issue(i + D, nxt)
            for t in range(5):
                for u in range(4):
                    self.mfma(t, u, self.RA + 20*slot + 4*t, self.RB + 16*slot + 4*u, first=(i == 0))
                if nxt is not None and early: self.issueA(i + D, nxt, t)
            if nxt is not None and not early:
                self.issue(i + D, nxt)
                for k in range(5): self.issueA(i + D, nxt, k)

def core_lane_setup(a, vLANE, vQ, vN, vT0, vT1, vDMA, vFR, vTR, rowstride, sT, sLDS):
    a(f"""
    v_lshrrev_b32 v{vT0}, 3, v{vLANE}
    v_and_b32 v{vT1}, 6, v{vT0}
    v_xor_b32 v{vT1}, v{vT1}, v{vLANE}
    v_and_b32 v{vT1}, 7, v{vT1}
    v_mul_u32_u24 v{vDMA}, {rowstride}, v{vT0}
    v_lshl_add_u32 v{vDMA}, v{vT1}, 4, v{vDMA}
    v_add_u32 v{vDMA+1}, {8*rowstride-1024}, v{vDMA}
    v_add_u32 v{vDMA+2}, {2*(8*rowstride-1024)}, v{vDMA}
    v_add_u32 v{vDMA+3}, {3*(8*rowstride-1024)}, v{vDMA}
    v_lshlrev_b32 v{vFR}, 4, v{vLANE}
    v_add_u32 v{vFR+1}, 4096, v{vFR}
    v_lshrrev_b32 v{vT0}, 2, v{vLANE}
    v_lshlrev_b32 v{vTR}, 7, v{vT0}
    v_and_b32 v{vT1}, 3, v{vLANE}
    v_lshl_add_u32 v{vTR}, v{vT1}, 3, v{vTR}
    v_add_u32 v{vTR}, s{sLDS}, v{vTR}
    v_lshrrev_b32 v{vT0}, 3, v{vLANE}
    v_and_b32 v{vT0}, 3, v{vT0}
    """)
    for u in (3, 2, 1, 0):
        a(f"v_xor_b32 v{vT1}, {u}, v{vT0}\nv_lshl_add_u32 v{vTR+u}, v{vT1}, 5, v{vTR}")

def gen_k1(a, opt):
    name = "k1_kernel"
    a.launch(name, 256, 512, 112*1024)
    a.begin_kernel(name)
    D = 4
    SW1, SHT, SB1, SWS, SWO = 8, 12, 16, 20, 40
    sW, sJ, sI, sFT, sDT, sT0, sT1, sT2, sSIG, sLDS, sOA, sOB, sBA, sBB, sL2E = 24, 25, 26, 27, 28, 29, 30, 31, 32, 33, 34, 35, 36, 37, 38
    vLANE, vQ, vN, vT0, vT1, vDMA, vFR, vTR, vBO = 1, 2, 3, 4, 5, 6, 10, 12, 16
    BIAS = 18
    RA = 32; RB = RA + 20*D
    NV = RB + 16*D
    a(f"s_cmp_ge_u32 s2, 256\ns_cbranch_scc1 K1_end")
    load_kernargs(a)
    a(f"""
    v_and_b32 v{vLANE}, 63, v0
    v_lshrrev_b32 v{vT0}, 6, v0
    v_lshrrev_b32 v{vQ}, 4, v{vLANE}
    v_readfirstlane_b32 s{sW}, v{vT0}
    v_and_b32 v{vN}, 15, v{vLANE}
    s_and_b32 s{sJ}, s2, 7
    s_lshr_b32 s{sI}, s2, 3
    s_mov_b32 s{sL2E}, {fbits(LOG2E)}
    s_waitcnt lgkmcnt(0)
    """)
    srd(a, SW1, P_W1, 2048*3456)
    srd(a, SB1, P_B1, 1728*2)
    srd(a, SWS, P_WS, WS_USED)
    srd(a, SWO, P_WO, 640*1280)
    a(f"s_cmp_eq_u32 s{sI}, 31\ns_cbranch_scc1 K1_wot\ns_cmp_ge_u32 s{sI}, 27\ns_cbranch_scc1 K1_o")
    a(f"s_cmp_ge_u32 s{sW}, 4\ns_cbranch_scc1 K1_end")
    a(f"""
    s_mul_i32 s{sT0}, s{sJ}, 27
    s_add_u32 s{sT0}, s{sT0}, s{sI}
    s_lshr_b32 s{sFT}, s{sT0}, 3
    s_and_b32 s{sDT}, s{sT0}, 7
    s_mul_i32 s{sLDS}, s{sW}, 20480
    s_mul_i32 s{sSIG}, s{sFT}, 5
    s_lshl_b32 s{sT0}, s{sDT}, 1
    s_add_u32 s{sSIG}, s{sSIG}, s{sT0}
    s_and_b32 s{sSIG}, s{sSIG}, 15
    s_mul_i32 s{sBB}, s{sW}, {16*32*3456}
    s_lshl_b32 s{sT0}, s{sFT}, 7
    s_add_u32 s{sBB}, s{sBB}, s{sT0}
    s_lshl_b32 s{sT0}, s{sDT}, 2
    s_add_u32 s{sT0}, s{sT0}, s{sW}
    s_mul_i32 s{sBA}, s{sT0}, {16*5120}
    s_add_u32 s{sBA}, s{sBA}, {HT_OFF}
    """)
    if not opt.get("rot", 1): a(f"s_mov_b32 s{sSIG}, 0")
    core_lane_setup(a, vLANE, vQ, vN, vT0, vT1, vDMA, vFR, vTR, 3456, sT0, sLDS)
    def addr():
        a(f"""
        s_mul_i32 s{sOB}, s{sSIG}, {32*3456}
        s_add_u32 s{sOB}, s{sOB}, s{sBB}
        s_mul_i32 s{sOA}, s{sSIG}, 5120
        s_add_u32 s{sOA}, s{sOA}, s{sBA}
        s_add_u32 s{sSIG}, s{sSIG}, 1
        s_and_b32 s{sSIG}, s{sSIG}, 15
        """)
    def tile_idx(tm, t): return ((tm >> 1)*5 + t)*2 + (tm & 1)
    def mfma(t, u, ra, rb, first):
        d = 4*tile_idx(u, t)
        a(f"v_mfma_f32_16x16x32_bf16 {ar(d,4)}, {vr(rb,4)}, {vr(ra,4)}, {'0' if first else ar(d,4)}")
    steps = [dict(kind="lds", addr=addr, srdA=SWS, offA=sOA, srdB=SW1, offB=sOB) for _ in range(16)]
    a(f"v_lshlrev_b32 v{vBO}, 3, v{vQ}")
    a(f"s_lshl_b32 s{sT0}, s{sFT}, 7\ns_add_u32 s{sT2}, s{sT0}, 64\ns_cmp_ge_u32 s{sW}, 1\ns_cselect_b32 s{sT1}, s{sT2}, s{sT0}")
    for i, so in enumerate((sT0, sT1, sT2)):
        for hh in range(2):
            a(f"buffer_load_dwordx2 {vr(BIAS+4*i+2*hh,2)}, v{vBO}, {sr(SB1,4)}, s{so} offen offset:{32*hh}", vm="bias")
    core = Core(a, D, RA, RB, vDMA, vFR, vTR, sLDS, mfma, wflag=opt.get("k1_wflag", ""), aflag=opt.get("k1_aflag", ""))
    core.run(steps)
    a(f"v_add_u32 v{vT0}, s{sLDS}, v{vFR}")
    for i in range(20): a(f"ds_write_b128 v{vT0}, {ar(4*i,4)} offset:{1024*i}", lg="red")
    a(f"s_lshl_b32 s{sT0}, s{sW}, 11\nv_add_u32 v{vT0}, s{sT0}, v{vFR}\nv_add_u32 v{vT1}, 40960, v{vT0}")
    a(f"""
    s_mul_i32 s{sT0}, s{sDT}, 276480
    s_mul_i32 s{sT1}, s{sFT}, 10240
    s_add_u32 s{sT0}, s{sT0}, s{sT1}
    s_lshl_b32 s{sT1}, s{sW}, 10
    s_add_u32 s{sT0}, s{sT0}, s{sT1}
    s_add_u32 s{sT0}, s{sT0}, {U_OFF}
    s_mov_b32 s{sOA}, {fbits(-2*0.7978845608028654*LOG2E)}
    s_mov_b32 s{sOB}, {fbits(-2*0.7978845608028654*0.044715*LOG2E)}
    """)
    a("s_waitcnt lgkmcnt(0)\ns_barrier")
    R = RA
    def rd(i):
        for reg in range(4):
            for hh in range(2):
                a(f"ds_read_b128 {vr(R+32*i+8*reg+4*hh,4)}, v{vT0 if reg < 2 else vT1} offset:{(reg&1)*20480 + i*8192 + hh*1024}", lg=f"r{i}")
    def fin(i):
        b = R + 32*i; T = 144
        a.wait(lg=f"r{i}")
        for k in range(8): a(f"v_add_f32 v{b+k}, v{b+k}, v{b+8+k}")
        for k in range(8): a(f"v_add_f32 v{b+16+k}, v{b+16+k}, v{b+24+k}")
        for k in range(4):
            a(f"v_lshlrev_b32 v{T+2*k}, 16, v{BIAS+4*i+k}\nv_and_b32 v{T+2*k+1}, 0xffff0000, v{BIAS+4*i+k}")
        for k in range(8): a(f"v_add_f32 v{b+k}, v{b+k}, v{b+16+k}")
        for k in range(8): a(f"v_add_f32 v{b+k}, v{b+k}, v{T+k}")
        a(f"v_mov_b32 v{T+16}, s{sOA}")
        for k in range(8): a(f"v_mul_f32 v{T+k}, v{b+k}, v{b+k}")
        for k in range(8): a(f"v_fma_f32 v{T+k}, v{T+k}, s{sOB}, v{T+16}")
        for k in range(8): a(f"v_mul_f32 v{T+k}, v{T+k}, v{b+k}")
        for k in range(8): a(f"v_exp_f32 v{T+k}, v{T+k}")
        for k in range(8): a(f"v_add_f32 v{T+k}, 1.0, v{T+k}")
        for k in range(8): a(f"v_rcp_f32 v{T+k}, v{T+k}")
        for k in range(8): a(f"v_mul_f32 v{b+k}, v{b+k}, v{T+k}")
        for k in range(4): a(f"v_cvt_pk_bf16_f32 v{b+8+k}, v{b+2*k}, v{b+2*k+1}")
        a(f"buffer_store_dwordx4 {vr(b+8,4)}, v{vFR}, {sr(SWS,4)}, s{sT0} offen", vm="st")
        a(f"s_add_u32 s{sT0}, s{sT0}, 4096")
    rd(0); rd(1)
    a.wait(vm="bias")
    fin(0);
    a(f"s_cmp_ge_u32 s{sW}, 2\ns_cbranch_scc1 K1_u_two")
    save = (list(a.vmq), list(a.lgq))
    rd(2); fin(1); fin(2)
    a("s_endpgm")
    a("K1_u_two:")
    a.vmq, a.lgq = save
    a.fence(4)
    fin(1)
    a("s_endpgm")
    a("K1_o:")
    a.hist = []; a.vmq = []; a.lgq = []
    sH = sFT
    PQR = 20
    PART = 60
    PHI = 124
    P = 124; E = 60; T6 = 10; OUTP = 144
    a(f"""
    s_lshl_b32 s{sH}, s{sJ}, 2
    s_add_u32 s{sH}, s{sH}, s{sI}
    s_sub_u32 s{sH}, s{sH}, 27
    v_lshlrev_b32 v{vT0}, 3, v{vLANE}
    s_mul_i32 s{sT0}, s{sH}, 81920
    s_lshl_b32 s{sT1}, s{sW}, 11
    s_add_u32 s{sT0}, s{sT0}, s{sT1}
    s_add_u32 s{sT0}, s{sT0}, {PQ_OFF}
    """)
    for c in range(5):
        for i in range(4):
            a(f"buffer_load_dwordx2 {vr(PQR+10*i+2*c,2)}, v{vT0}, {sr(SWS,4)}, s{sT0} offen offset:{512*i}", vm="pq")
        if c < 4: a(f"s_add_u32 s{sT0}, s{sT0}, 16384")
    a(f"""
    v_and_b32 v{vT1}, 255, v0
    v_lshlrev_b32 v{vT1}, 4, v{vT1}
    s_lshr_b32 s{sT1}, s{sW}, 2
    s_lshl_b32 s{sT1}, s{sT1}, 4
    s_lshl_b32 s{sT0}, s{sH}, 5
    s_add_u32 s{sT0}, s{sT0}, s{sT1}
    s_mul_i32 s{sT0}, s{sT0}, 3360
    s_add_u32 s{sT0}, s{sT0}, {KVP_OFF}
    """)
    for j in range(16):
        a(f"buffer_load_dwordx4 {vr(PART+4*j,4)}, v{vT1}, {sr(SWS,4)}, s{sT0} offen", vm="part")
        if j < 15: a(f"s_add_u32 s{sT0}, s{sT0}, 3360")
    a.wait(vm="part")
    for step in (8, 4, 2, 1):
        for j in range(step):
            for k in range(4):
                a(f"v_add_f32 v{PART+4*j+k}, v{PART+4*j+k}, v{PART+4*(j+step)+k}")
    a(f"s_lshr_b32 s{sT1}, s{sW}, 2\ns_lshl_b32 s{sT1}, s{sT1}, 12\nv_add_u32 v{vT0}, s{sT1}, v{vT1}")
    a(f"ds_write_b128 v{vT0}, {vr(PART,4)}")
    a("s_waitcnt lgkmcnt(0)\ns_barrier")
    a(f"ds_read_b128 {vr(PART,4)}, v{vT1}\nds_read_b128 {vr(PART+4,4)}, v{vT1} offset:4096")
    a("s_waitcnt lgkmcnt(0)")
    for k in range(4): a(f"v_add_f32 v{PART+k}, v{PART+k}, v{PART+4+k}")
    a(f"v_cvt_pk_bf16_f32 v{PART+8}, v{PART}, v{PART+1}\nv_cvt_pk_bf16_f32 v{PART+9}, v{PART+2}, v{PART+3}")
    a(f"""
    v_mov_b32 v{PART+10}, 0
    v_cmp_gt_u32 vcc, {210*16}, v{vT1}
    v_cndmask_b32 v{PART+8}, v{PART+10}, v{PART+8}, vcc
    v_cndmask_b32 v{PART+9}, v{PART+10}, v{PART+9}, vcc
    v_lshrrev_b32 v{vT0}, 1, v{vT1}
    ds_write_b64 v{vT0}, {vr(PART+8,2)} offset:8192
    """)
    for i in range(4):
        for k in range(10):
            a(f"v_lshlrev_b32 v{P+2*k}, 16, v{PQR+10*i+k}\nv_and_b32 v{P+2*k+1}, 0xffff0000, v{PQR+10*i+k}")
        softmax_dual(a, P, E+12, T6, OUTP, sL2E)
        for k in range(20): a(f"v_accvgpr_write_b32 a{20*i+k}, v{OUTP+k}")
    a("s_waitcnt lgkmcnt(0)\ns_barrier")
    AD = 10
    a(f"""
    v_and_b32 v{vT0}, 3, v{vN}
    v_mul_u32_u24 v{vT0}, 80, v{vT0}
    v_lshrrev_b32 v{vT1}, 2, v{vN}
    v_cmp_eq_u32 vcc, v{vT1}, v{vQ}
    v_mov_b32 v{vT1}, {8192+1680}
    """)
    for t in range(5):
        a(f"v_add_u32 v{vBO}, {8192+320*t}, v{vT0}\nv_cndmask_b32 v{AD+t}, v{vT1}, v{vBO}, vcc")
    a(f"v_mov_b32 v{vBO}, {8192+1600}\nv_cndmask_b32 v{AD+5}, v{vT1}, v{vBO}, vcc")
    AF = 60
    CC = 100
    RD = 132
    OB = 20
    order = [5, 0, 1, 2, 3, 4]
    def rdA(n):
        t = order[n]
        for c in range(5): a(f"ds_read_b128 {vr(AF+20*(n&1)+4*c,4)}, v{AD+t} offset:{16*c}", lg=f"A{n}")
    def post(n):
        t = order[n]; cb = CC + 16*(n & 1)
        if t == 5:
            for i in range(4): a(f"v_add_f32 v{RD+i}, {fbits(1e-6)}, v{cb+4*i}")
            for i in range(4): a(f"v_rcp_f32 v{RD+i}, v{RD+i}")
        else:
            for i in range(4):
                for k in range(4): a(f"v_mul_f32 v{cb+4*i+k}, v{cb+4*i+k}, v{RD+i}")
            for i in range(4):
                for k in range(2): a(f"v_cvt_pk_bf16_f32 v{OB+10*i+2*t+k}, v{cb+4*i+2*k}, v{cb+4*i+2*k+1}")
    rdA(0)
    for n in range(6):
        if n + 1 < 6: rdA(n + 1)
        a.wait(lg=f"A{n}")
        cb = CC + 16*(n & 1)
        for c in range(5):
            for i in range(4):
                a(f"v_mfma_f32_16x16x32_bf16 {vr(cb+4*i,4)}, {vr(AF+20*(n&1)+4*c,4)}, {ar(20*i+4*c,4)}, {'0' if c == 0 else vr(cb+4*i,4)}")
            if c == 2 and n > 0: post(n - 1)
    post(5)
    a(f"""
    v_lshlrev_b32 v{vT0}, 10, v{vQ}
    v_lshl_add_u32 v{vT0}, v{vN}, 4, v{vT0}
    s_mul_i32 s{sT0}, s{sW}, {4*81920}
    s_add_u32 s{sT0}, s{sT0}, {O_OFF}
    s_lshr_b32 s{sT1}, s{sH}, 2
    s_lshl_b32 s{sT1}, s{sT1}, 12
    s_and_b32 s{sT2}, s{sH}, 3
    s_lshl_b32 s{sT2}, s{sT2}, 8
    s_add_u32 s{sOA}, s{sT1}, s{sT2}
    s_add_u32 s{sOA}, s{sOA}, s{sT0}
    s_lshr_b32 s{sT1}, s{sH}, 3
    s_lshl_b32 s{sT1}, s{sT1}, 12
    s_lshr_b32 s{sT2}, s{sH}, 1
    s_and_b32 s{sT2}, s{sT2}, 3
    s_lshl_b32 s{sT2}, s{sT2}, 8
    s_add_u32 s{sOB}, s{sT1}, s{sT2}
    s_and_b32 s{sT2}, s{sH}, 1
    s_lshl_b32 s{sT2}, s{sT2}, 3
    s_add_u32 s{sOB}, s{sOB}, s{sT2}
    s_add_u32 s{sOB}, s{sOB}, s{sT0}
    s_add_u32 s{sOB}, s{sOB}, {16*4096}
    """)
    for i in range(4):
        a(f"buffer_store_dwordx4 {vr(OB+10*i,4)}, v{vT0}, {sr(SWS,4)}, s{sOA} offen")
        a(f"s_add_u32 s{sT1}, s{sOA}, {8*4096}")
        a(f"buffer_store_dwordx4 {vr(OB+10*i+4,4)}, v{vT0}, {sr(SWS,4)}, s{sT1} offen")
        a(f"buffer_store_dwordx2 {vr(OB+10*i+8,2)}, v{vT0}, {sr(SWS,4)}, s{sOB} offen")
        if i < 3: a(f"s_add_u32 s{sOA}, s{sOA}, 81920\ns_add_u32 s{sOB}, s{sOB}, 81920")
    a("s_endpgm")
    a("K1_wot:")
    a.hist = []; a.vmq = []; a.lgq = []
    a(f"""
    v_mul_u32_u24 v{vT0}, 26, v{vLANE}
    v_lshrrev_b32 v{vT0}, 8, v{vT0}
    v_mul_u32_u24 v{vT1}, 1120, v{vT0}
    v_lshl_add_u32 v{vT1}, v{vLANE}, 4, v{vT1}
    s_mov_b32 s{sOA}, -1
    s_mov_b32 s{sOA+1}, 0x0fffffff
    s_mul_i32 s{sT0}, s{sW}, {6*1280}
    s_mul_i32 s{sT1}, s{sJ}, 160
    s_add_u32 s{sT0}, s{sT0}, s{sT1}
    s_mul_i32 s{sT1}, s{sW}, 960
    s_mov_b64 exec, {sr(sOA,2)}
    """)
    for i in range(14):
        a(f"s_add_u32 m0, s{sT1}, {i*8*960}")
        a(f"buffer_load_dwordx4 v{vT1}, {sr(SWO,4)}, s{sT0} offen lds")
        if i < 13: a(f"s_add_u32 s{sT0}, s{sT0}, {48*1280}")
    a(f"""
    s_mov_b64 exec, -1
    v_lshrrev_b32 v{vT0}, 2, v{vN}
    v_and_b32 v{vT1}, 3, v{vN}
    v_mul_u32_u24 v{vT1}, 40, v{vT1}
    v_mul_u32_u24 v{vT0}, 160, v{vT0}
    v_add_u32 v{vT0}, v{vT0}, v{vT1}
    v_mul_u32_u24 v{vT1}, 3200, v{vQ}
    s_mul_i32 s{sT0}, s{sW}, 12800
    v_add3_u32 v{vDMA}, v{vT0}, v{vT1}, s{sT0}
    v_add_u32 v{vDMA+1}, v{vDMA}, v{vT1}
    v_add_u32 v{vDMA+1}, s{sT0}, v{vDMA+1}
    v_lshlrev_b32 v{vFR}, 4, v{vLANE}
    v_add_u32 v{vFR+1}, 4096, v{vFR}
    s_mul_i32 s{sT0}, s{sJ}, 102400
    s_mul_i32 s{sT1}, s{sW}, 5120
    s_add_u32 s{sT0}, s{sT0}, s{sT1}
    s_add_u32 s{sT0}, s{sT0}, {WOT_OFF}
    s_waitcnt vmcnt(0)
    s_barrier
    """)
    def wot(reg, addr, base, hs):
        for t in range(5):
            for hh in range(2):
                a(f"ds_read_b64_tr_b16 {vr(reg+4*t+2*hh,2)}, v{addr} offset:{base + hh*hs + 8*t}")
        a("s_waitcnt lgkmcnt(0)")
        for t in range(5):
            if t < 4: a(f"buffer_store_dwordx4 {vr(reg+4*t,4)}, v{vFR}, {sr(SWS,4)}, s{sT0} offen offset:{1024*t}")
            else: a(f"buffer_store_dwordx4 {vr(reg+4*t,4)}, v{vFR+1}, {sr(SWS,4)}, s{sT0} offen")
        a(f"s_add_u32 s{sT0}, s{sT0}, {8*5120}")
    wot(32, vDMA, 0, 640)
    wot(52, vDMA, 1280, 640)
    a(f"s_cmp_ge_u32 s{sW}, 4\ns_cbranch_scc1 K1_end")
    wot(72, vDMA+1, 16*160, 3200)
    a("K1_end:\ns_endpgm")
    a.end_kernel(name, NV + 80, accum=NV)

def gen_k2(a, opt):
    name = "k2_kernel"
    a.launch(name, 256, 256, 81920)
    a.begin_kernel(name)
    D = 5
    SW2, SU, SB2, SWS, SX, SOUT = 8, 12, 16, 20, 40, 44
    sW, sJ, sI, sST, sDT, sT0, sT1, sT2, sSIG, sLDS, sOA, sOB, sBA, sBB, sSG2, sBA2, sBB2, sXO = 24, 25, 26, 27, 28, 29, 30, 31, 32, 33, 34, 35, 36, 37, 38, 39, 48, 49
    vLANE, vQ, vN, vT0, vT1, vDMA, vFR, vTR, vXO, vB2 = 1, 2, 3, 4, 5, 6, 10, 12, 16, 17
    XR = 18
    RA = 32; RB = RA + 20*D; NV = RB + 16*D
    a(f"s_cmp_ge_u32 s2, 256\ns_cbranch_scc1 K2_end")
    load_kernargs(a)
    a(f"""
    v_and_b32 v{vLANE}, 63, v0
    v_lshrrev_b32 v{vT0}, 6, v0
    v_lshrrev_b32 v{vQ}, 4, v{vLANE}
    v_readfirstlane_b32 s{sW}, v{vT0}
    v_and_b32 v{vN}, 15, v{vLANE}
    s_and_b32 s{sJ}, s2, 7
    s_lshr_b32 s{sI}, s2, 3
    s_lshr_b32 s{sT2}, s{sI}, 3
    s_lshl_b32 s{sST}, s{sJ}, 2
    s_add_u32 s{sST}, s{sST}, s{sT2}
    s_and_b32 s{sDT}, s{sI}, 7
    s_mul_i32 s{sLDS}, s{sW}, 20480
    s_mul_i32 s{sSIG}, s{sDT}, 7
    s_lshr_b32 s{sSIG}, s{sSIG}, 2
    s_lshl_b32 s{sT0}, s{sT2}, 2
    s_add_u32 s{sSIG}, s{sSIG}, s{sT0}
    s_sub_u32 s{sT0}, s{sSIG}, 14
    s_cmp_ge_u32 s{sSIG}, 14
    s_cselect_b32 s{sSIG}, s{sT0}, s{sSIG}
    s_add_u32 s{sSG2}, s{sDT}, s{sT2}
    s_sub_u32 s{sT0}, s{sSG2}, 5
    s_cmp_ge_u32 s{sSG2}, 5
    s_cselect_b32 s{sSG2}, s{sT0}, s{sSG2}
    s_sub_u32 s{sT0}, s{sSG2}, 5
    s_cmp_ge_u32 s{sSG2}, 5
    s_cselect_b32 s{sSG2}, s{sT0}, s{sSG2}
    ; bases
    s_mul_i32 s{sBB}, s{sW}, {14*32*4096}
    s_lshl_b32 s{sT0}, s{sST}, 7
    s_add_u32 s{sBB}, s{sBB}, s{sT0}
    s_mul_i32 s{sBA}, s{sW}, {14*5120}
    s_mul_i32 s{sBA2}, s{sDT}, 102400
    s_mul_i32 s{sT0}, s{sW}, {5*5120}
    s_add_u32 s{sBA2}, s{sBA2}, s{sT0}
    s_add_u32 s{sBA2}, s{sBA2}, {WOT_OFF}
    s_mul_i32 s{sBB2}, s{sST}, 81920
    s_mul_i32 s{sT0}, s{sW}, {5*4096}
    s_add_u32 s{sBB2}, s{sBB2}, s{sT0}
    s_add_u32 s{sBB2}, s{sBB2}, {O_OFF}
    s_mul_i32 s{sT1}, s{sDT}, 276480
    s_add_u32 s{sT1}, s{sT1}, {U_OFF}
    s_waitcnt lgkmcnt(0)
    """)
    if not opt.get("rot", 1): a(f"s_mov_b32 s{sSIG}, 0\ns_mov_b32 s{sSG2}, 0")
    srd(a, SW2, P_W2, 1728*4096)
    srd(a, SU, P_WS, 276480, off=f"s{sT1}")
    srd(a, SB2, P_B2, 4096)
    srd(a, SWS, P_WS, WS_USED)
    srd(a, SX, P_X, 2048*1280)
    srd(a, SOUT, P_OUT, 2048*1280)
    core_lane_setup(a, vLANE, vQ, vN, vT0, vT1, vDMA, vFR, vTR, 4096, sT0, sLDS)
    def addr1():
        a(f"""
        s_lshl_b32 s{sOB}, s{sSIG}, 17
        s_add_u32 s{sOB}, s{sOB}, s{sBB}
        s_mul_i32 s{sOA}, s{sSIG}, 5120
        s_add_u32 s{sOA}, s{sOA}, s{sBA}
        s_add_u32 s{sSIG}, s{sSIG}, 1
        s_cmp_eq_u32 s{sSIG}, 14
        s_cselect_b32 s{sSIG}, 0, s{sSIG}
        """)
    def addr2():
        a(f"""
        s_lshl_b32 s{sOB}, s{sSG2}, 12
        s_add_u32 s{sOB}, s{sOB}, s{sBB2}
        s_mul_i32 s{sOA}, s{sSG2}, 5120
        s_add_u32 s{sOA}, s{sOA}, s{sBA2}
        s_add_u32 s{sSG2}, s{sSG2}, 1
        s_cmp_eq_u32 s{sSG2}, 5
        s_cselect_b32 s{sSG2}, 0, s{sSG2}
        """)
    def mfma(t, u, ra, rb, first):
        d = 4*(t*4 + u)
        a(f"v_mfma_f32_16x16x32_bf16 {ar(d,4)}, {vr(ra,4)}, {vr(rb,4)}, {'0' if first else ar(d,4)}")
    steps = [dict(kind="lds", addr=addr1, srdA=SU, offA=sOA, srdB=SW2, offB=sOB) for _ in range(14)]
    steps += [dict(kind="dir", addr=addr2, srdA=SWS, offA=sOA, srdB=SWS, offB=sOB) for _ in range(5)]
    def hook(_):
        a(f"""
        v_mul_u32_u24 v{vXO}, 1280, v{vN}
        v_mul_u32_u24 v{vT0}, 40, v{vQ}
        v_add_u32 v{vXO}, v{vXO}, v{vT0}
        s_lshl_b32 s{sT0}, s{sST}, 2
        s_add_u32 s{sT0}, s{sT0}, s{sW}
        s_mul_i32 s{sXO}, s{sT0}, {16*1280}
        s_mul_i32 s{sT1}, s{sDT}, 160
        s_add_u32 s{sXO}, s{sXO}, s{sT1}
        s_lshl_b32 s{sT0}, s{sT0}, 5
        v_lshlrev_b32 v{vT0}, 1, v{vN}
        """)
        a(f"buffer_load_dwordx4 {vr(XR,4)}, v{vXO}, {sr(SX,4)}, s{sXO} offen", vm="xr")
        a(f"buffer_load_dwordx4 {vr(XR+4,4)}, v{vXO}, {sr(SX,4)}, s{sXO} offen offset:16", vm="xr")
        a(f"buffer_load_dwordx2 {vr(XR+8,2)}, v{vXO}, {sr(SX,4)}, s{sXO} offen offset:32", vm="xr")
        a(f"buffer_load_ushort v{vB2}, v{vT0}, {sr(SB2,4)}, s{sT0} offen", vm="xr")
    core = Core(a, D, RA, RB, vDMA, vFR, vTR, sLDS, mfma, wflag=opt.get("k2_wflag", ""), aflag=opt.get("k2_aflag", ""))
    core.run(steps, hook)
    a(f"v_add_u32 v{vT0}, s{sLDS}, v{vFR}")
    for i in range(20): a(f"ds_write_b128 v{vT0}, {ar(4*i,4)} offset:{1024*i}", lg="red")
    a(f"s_lshl_b32 s{sT0}, s{sW}, 10\nv_add_u32 v{vT0}, s{sT0}, v{vFR}\nv_add_u32 v{vT1}, 40960, v{vT0}")
    XE = RB
    a(f"v_lshlrev_b32 v{vB2}, 16, v{vB2}")
    for k in range(10):
        a(f"v_lshlrev_b32 v{XE+2*k}, 16, v{XR+k}\nv_and_b32 v{XE+2*k+1}, 0xffff0000, v{XR+k}")
    for k in range(20): a(f"v_add_f32 v{XE+k}, v{XE+k}, v{vB2}")
    a("s_waitcnt lgkmcnt(0)\ns_barrier")
    R = RA
    for t in range(5):
        for reg in range(4):
            a(f"ds_read_b128 {vr(R+16*t+4*reg,4)}, v{vT0 if reg < 2 else vT1} offset:{(reg&1)*20480 + t*4096}", lg=f"r{t}")
        if t == 2: a.wait(lg="r0")
    for t in range(5):
        a.wait(lg=f"r{t}")
        b = R + 16*t
        for k in range(4): a(f"v_add_f32 v{b+k}, v{b+k}, v{b+4+k}")
        for k in range(4): a(f"v_add_f32 v{b+8+k}, v{b+8+k}, v{b+12+k}")
        for k in range(4): a(f"v_add_f32 v{b+k}, v{b+k}, v{XE+4*t+k}")
        for k in range(4): a(f"v_add_f32 v{b+k}, v{b+k}, v{b+8+k}")
        for k in range(2): a(f"v_cvt_pk_bf16_f32 v{XR+2*t+k}, v{b+2*k}, v{b+2*k+1}")
    a(f"buffer_store_dwordx4 {vr(XR,4)}, v{vXO}, {sr(SOUT,4)}, s{sXO} offen")
    a(f"buffer_store_dwordx4 {vr(XR+4,4)}, v{vXO}, {sr(SOUT,4)}, s{sXO} offen offset:16")
    a(f"buffer_store_dwordx2 {vr(XR+8,2)}, v{vXO}, {sr(SOUT,4)}, s{sXO} offen offset:32")
    a("K2_end:\ns_endpgm")
    a.end_kernel(name, NV + 80, accum=NV)

def build(opt=None):
    opt = opt or {}
    a = Asm()
    gen_k0(a, opt); gen_k1(a, opt); gen_k2(a, opt)
    hdr = "LN + hedgehog linear attention + mixer token MLP, three launches (generated by dev/gen.py)"
    return a.text(hdr), a

if __name__ == "__main__":
    out = sys.argv[1] if len(sys.argv) > 1 else "parallel_sum__linear_kernel_hedgehog__mixer_token_mlp__prompt.s"
    txt, a = build()
    open(out, "w").write(txt)
    print("wrote", out, "instrs", a.ninstr, "nops", a.nops, "bytes", len(txt))
```

```python
import sys
from asmlib import Asm

HT_OFF  = 0
HT_SZ   = 8*64*5*1024
PQ_OFF  = HT_OFF + HT_SZ
PQ_SZ   = 32*5*2048*8
KVP_OFF = PQ_OFF + PQ_SZ
KVP_SZ  = 32*32*3360
U_OFF   = KVP_OFF + KVP_SZ + 4096
U_SZ    = 8*54*5*1024
O_OFF   = U_OFF + U_SZ
O_SZ    = 32*20*4*1024
WOT_OFF = O_OFF + O_SZ
WOT_SZ  = 8*20*5*1024
WS_USED = WOT_OFF + WOT_SZ
BIG = 0x7f000000

def vr(b, n=1): return f"v{b}" if n == 1 else f"v[{b}:{b+n-1}]"
def ar(b, n=1): return f"a{b}" if n == 1 else f"a[{b}:{b+n-1}]"
def sr(b, n=1): return f"s{b}" if n == 1 else f"s[{b}:{b+n-1}]"

P_X, P_WQKV, P_WPHI, P_WO, P_W1, P_B1, P_W2, P_B2, P_OUT, P_DBG, P_WS = 64, 66, 68, 70, 74, 76, 78, 80, 82, 84, 86

def load_kernargs(a):
    a("s_load_dwordx16 s[64:79], s[0:1], 0\ns_load_dwordx8 s[80:87], s[0:1], 64")

def srd(a, d, ptr, nbytes, off=None):
    if off is None:
        a(f"s_mov_b32 s{d}, s{ptr}\ns_mov_b32 s{d+1}, s{ptr+1}")
    else:
        a(f"s_add_u32 s{d}, s{ptr}, {off}\ns_addc_u32 s{d+1}, s{ptr+1}, 0")
    a(f"s_mov_b32 s{d+2}, {nbytes}\ns_mov_b32 s{d+3}, 0x20000")

STAMP_OFF = 32 << 20
STAMP_REGS = [50, 52, 54, 56, 58, 60, 62, 88, 90, 92, 94, 96]
class Stamper:
    def __init__(self, a, on, kidx):
        self.a = a; self.on = on; self.kidx = kidx; self.names = []
    def start(self):
        if self.on: self.a("s_memrealtime s[98:99]")
        self("start")
    def __call__(self, name):
        if not self.on: return
        if name not in self.names: self.names.append(name)
        r = STAMP_REGS[self.names.index(name)]
        self.a(f"s_memtime s[{r}:{r+1}]")
    def finish(self, sW, nw):
        if not self.on: return
        a = self.a
        a("s_waitcnt vmcnt(0)")
        self("end")
        a("s_memrealtime s[100:101]\ns_waitcnt lgkmcnt(0)")
        for i in range(12): a(f"v_mov_b32 v{32+i}, s{STAMP_REGS[i]}")
        a("v_mov_b32 v44, s98\nv_mov_b32 v45, s100\ns_getreg_b32 s3, hwreg(HW_REG_XCC_ID)\nv_mov_b32 v46, s3\nv_mov_b32 v47, 0")
        a(f"s_mul_i32 s3, s2, {nw}\ns_add_u32 s3, s3, s{sW}\ns_lshl_b32 s3, s3, 6\ns_add_u32 s3, s3, {STAMP_OFF + (self.kidx << 20)}")
        a(f"s_mov_b32 s4, s{P_WS}\ns_mov_b32 s5, s{P_WS+1}\ns_mov_b32 s6, {64<<20}\ns_mov_b32 s7, 0x20000")
        a("v_mov_b32 v48, 0\ns_mov_b64 exec, 1")
        for i in range(4): a(f"buffer_store_dwordx4 v[{32+4*i}:{35+4*i}], v48, s[4:7], s3 offen offset:{16*i}")

def ticket(a, opt, kname, sW, lds_off, endlabel, srdreg=4):
    if not opt.get("ticket", 1):
        a(f"s_cmp_ge_u32 s2, 256\ns_cbranch_scc1 {endlabel}")
        return
    L = f"{kname}_tk"
    a(f"""
    s_mov_b32 s4, s{P_DBG}
    s_mov_b32 s5, s{P_DBG+1}
    s_mov_b32 s6, 256
    s_mov_b32 s7, 0x20000
    v_mov_b32 v46, {lds_off}
    s_cmp_lg_u32 s{sW}, 0
    s_cbranch_scc1 {L}_wait
    s_getreg_b32 s2, hwreg(HW_REG_XCC_ID)
    s_and_b32 s2, s2, 7
    s_mov_b32 s3, 0
    s_mov_b64 exec, 1
    {L}_loop:
    v_mov_b32 v45, 1
    s_lshl_b32 s49, s2, 5
    v_mov_b32 v47, s49
    buffer_atomic_add v45, v47, s[4:7], 0 offen sc0
    s_waitcnt vmcnt(0)
    v_readfirstlane_b32 s49, v45
    s_cmp_lt_u32 s49, 32
    s_cbranch_scc1 {L}_got
    s_add_u32 s2, s2, 1
    s_and_b32 s2, s2, 7
    s_add_u32 s3, s3, 1
    s_cmp_lt_u32 s3, 8
    s_cbranch_scc1 {L}_loop
    s_mov_b32 s49, 32
    {L}_got:
    s_lshl_b32 s49, s49, 3
    s_or_b32 s2, s2, s49
    v_mov_b32 v45, s2
    ds_write_b32 v46, v45
    s_mov_b64 exec, -1
    s_waitcnt lgkmcnt(0)
    {L}_wait:
    s_barrier
    ds_read_b32 v45, v46
    s_waitcnt lgkmcnt(0)
    v_readfirstlane_b32 s2, v45
    s_cmp_ge_u32 s2, 256
    s_cbranch_scc1 {endlabel}
    """)

LOG2E = 1.4426950408889634
import struct
def fbits(x): return "0x%08x" % struct.unpack("<I", struct.pack("<f", x))[0]

def softmax_dual(a, P, E, T, OUT, sL2E):
    mx, mn, nmx, s1, s2, t = T, T+1, T+2, T+3, T+4, T+5
    a(f"v_max3_f32 v{mx}, v{P}, v{P+1}, v{P+2}")
    a(f"v_min3_f32 v{mn}, v{P}, v{P+1}, v{P+2}")
    for i in range(3, 19, 2):
        a(f"v_max3_f32 v{mx}, v{mx}, v{P+i}, v{P+i+1}")
        a(f"v_min3_f32 v{mn}, v{mn}, v{P+i}, v{P+i+1}")
    a(f"v_max_f32 v{mx}, v{mx}, v{P+19}")
    a(f"v_min_f32 v{mn}, v{mn}, v{P+19}")
    a(f"v_mul_f32 v{nmx}, s{sL2E}, v{mx}")
    a(f"v_mul_f32 v{mn}, s{sL2E}, v{mn}")
    for i in range(20):
        a(f"v_fma_f32 v{E+i}, v{P+i}, s{sL2E}, -v{nmx}")
        a(f"v_fma_f32 v{E+20+i}, -v{P+i}, s{sL2E}, v{mn}")
    for i in range(40):
        a(f"v_exp_f32 v{E+i}, v{E+i}")
    a(f"v_add_f32 v{s1}, v{E}, v{E+1}")
    a(f"v_add_f32 v{s2}, v{E+20}, v{E+21}")
    for i in range(2, 20):
        a(f"v_add_f32 v{s1}, v{s1}, v{E+i}")
        a(f"v_add_f32 v{s2}, v{s2}, v{E+20+i}")
    a(f"v_rcp_f32 v{s1}, v{s1}")
    a(f"v_rcp_f32 v{s2}, v{s2}")
    for i in range(20):
        a(f"v_mul_f32 v{E+i}, v{E+i}, v{s1}")
        a(f"v_mul_f32 v{E+20+i}, v{E+20+i}, v{s2}")
    for i in range(20):
        a(f"v_cvt_pk_bf16_f32 v{OUT+i}, v{E+2*i}, v{E+2*i+1}")

def gen_k0(a, opt):
    name = "k0_kernel"
    a.launch(name, 256, 256, 163840)
    a.begin_kernel(name)
    STG = 15360; NSLOT = 10; HS = 153600
    xfl = opt.get("k0_xflag", ""); wfl = opt.get("k0_wflag", "")
    SX, SW, SPHI, SWS = 8, 12, 16, 20
    sW, sRT, sG, sROT, sT0, sT1, sT2, sKB, sMASK, sL2E, sWOFF, sSLOT = 24, 25, 26, 27, 28, 29, 30, 31, 32, 34, 35, 36
    vLANE, vQ, vN, vXO, vWO, vTR, vT0, vT1, vT2, vT3, vONE = 1, 2, 3, 4, 5, 6, 7, 8, 9, 10, 12
    vST = 16
    XF = 32
    ACC = 112
    WF = 172
    HX = 204
    TMP = 216
    st = Stamper(a, opt.get("stamps"), 0); opt["st0"] = st; st.start()
    load_kernargs(a)
    a(f"""
    v_and_b32 v{vLANE}, 63, v0
    v_lshrrev_b32 v{vT0}, 6, v0
    v_lshrrev_b32 v{vQ}, 4, v{vLANE}
    v_readfirstlane_b32 s{sW}, v{vT0}
    v_and_b32 v{vN}, 15, v{vLANE}
    s_waitcnt lgkmcnt(0)
    """)
    ticket(a, opt, "K0", sW, 153600, "K0_end")
    st("ticket")
    a(f"""
    s_and_b32 s{sT0}, s2, 7
    s_lshr_b32 s{sT1}, s2, 3
    s_lshr_b32 s{sRT}, s{sT0}, 1
    s_lshl_b32 s{sRT}, s{sRT}, 3
    s_lshr_b32 s{sT2}, s{sT1}, 2
    s_add_u32 s{sRT}, s{sRT}, s{sT2}
    s_and_b32 s{sG}, s{sT0}, 1
    s_lshl_b32 s{sG}, s{sG}, 2
    s_and_b32 s{sT1}, s{sT1}, 3
    s_add_u32 s{sG}, s{sG}, s{sT1}
    s_mul_i32 s{sROT}, s{sT2}, 5
    s_lshr_b32 s{sROT}, s{sROT}, 1
    s_mov_b32 s{sMASK}, -1
    s_mov_b32 s{sMASK+1}, 0x0fffffff
    s_mov_b32 s{sL2E}, {fbits(LOG2E)}
    ; x voffset = n*1280 + q*16
    v_mul_u32_u24 v{vXO}, 1280, v{vN}
    v_lshl_add_u32 v{vXO}, v{vQ}, 4, v{vXO}
    ; W dma voffset: lane<60: r=lane/30, c=lane%30, sec=c/10, cc=c%10 -> r*3840 + sec*1280 + cc*16
    v_cmp_le_u32 vcc, 30, v{vLANE}
    v_mov_b32 v{vT0}, 0
    v_mov_b32 v{vT1}, 30
    v_cndmask_b32 v{vT1}, v{vT0}, v{vT1}, vcc
    v_sub_u32 v{vT2}, v{vLANE}, v{vT1}
    v_mul_u32_u24 v{vWO}, 128, v{vT1}
    v_mul_u32_u24 v{vT3}, 26, v{vT2}
    v_lshrrev_b32 v{vT3}, 8, v{vT3}
    v_mul_u32_u24 v{vT0}, 1120, v{vT3}
    v_lshl_add_u32 v{vT0}, v{vT2}, 4, v{vT0}
    v_add_u32 v{vWO}, v{vWO}, v{vT0}
    s_waitcnt lgkmcnt(0)
    """)
    srd(a, SX, P_X, 2048*1280)
    srd(a, SW, P_WQKV, 640*3840)
    srd(a, SPHI, P_WPHI, 32*800)
    srd(a, SWS, P_WS, WS_USED)
    a(f"s_lshl_b32 s{sT0}, s{sRT}, 2\ns_add_u32 s{sT0}, s{sT0}, s{sW}\ns_mul_i32 s{sT0}, s{sT0}, {16*1280}")
    a(f"s_mov_b32 s{sKB}, s{sROT}")
    for i in range(20):
        a(f"s_lshl_b32 s{sT1}, s{sKB}, 6\ns_add_u32 s{sT1}, s{sT1}, s{sT0}")
        a(f"buffer_load_dwordx4 {vr(XF+4*i,4)}, v{vXO}, {sr(SX,4)}, s{sT1} offen {xfl}", vm=f"x{i}")
        a(f"s_add_u32 s{sKB}, s{sKB}, 1\ns_cmp_eq_u32 s{sKB}, 20\ns_cselect_b32 s{sKB}, 0, s{sKB}")
    a(f"v_mul_u32_u24 v{vT0}, 1280, v{vN}\nv_mul_u32_u24 v{vT1}, 40, v{vQ}\nv_add_u32 v{vT0}, v{vT0}, v{vT1}")
    a(f"s_mul_i32 s{sT1}, s{sG}, 160\ns_add_u32 s{sT1}, s{sT1}, s{sT0}")
    a(f"buffer_load_dwordx4 {vr(HX,4)}, v{vT0}, {sr(SX,4)}, s{sT1} offen", vm="hx")
    a(f"buffer_load_dwordx4 {vr(HX+4,4)}, v{vT0}, {sr(SX,4)}, s{sT1} offen offset:16", vm="hx")
    a(f"buffer_load_dwordx2 {vr(HX+8,2)}, v{vT0}, {sr(SX,4)}, s{sT1} offen offset:32", vm="hx")
    a(f"""
    s_and_b32 s{sT1}, s{sW}, 1
    s_lshl_b32 s{sT1}, s{sT1}, 4
    s_lshr_b32 s{sT2}, s{sW}, 1
    s_lshl_b32 s{sT2}, s{sT2}, 2
    s_add_u32 s{sT1}, s{sT1}, s{sT2}
    s_mul_i32 s{sWOFF}, s{sT1}, 3840
    s_mul_i32 s{sT1}, s{sG}, 160
    s_add_u32 s{sWOFF}, s{sWOFF}, s{sT1}
    s_mul_i32 s{sSLOT}, s{sW}, 3840
    s_mov_b32 s{sKB}, s{sROT}
    """)
    def dma_stage(s):
        slot = s % NSLOT
        a(f"s_mul_i32 s{sT1}, s{sKB}, {32*3840}\ns_add_u32 s{sT1}, s{sT1}, s{sWOFF}")
        a(f"s_mov_b64 exec, {sr(sMASK,2)}")
        for ii in range(4):
            a(f"s_add_u32 m0, s{sSLOT}, {slot*STG + ii*960}")
            ro = (8*(ii >> 1) + 2*(ii & 1)) * 3840
            if ro: a(f"s_add_u32 s{sT2}, s{sT1}, {ro}")
            a(f"buffer_load_dwordx4 v{vWO}, {sr(SW,4)}, s{sT2 if ro else sT1} offen {wfl} lds", vm=f"w{s}")
        a("s_mov_b64 exec, -1")
        a(f"s_add_u32 s{sKB}, s{sKB}, 1\ns_cmp_eq_u32 s{sKB}, 20\ns_cselect_b32 s{sKB}, 0, s{sKB}")
    for s in range(NSLOT): dma_stage(s)
    st("issued")
    a(f"""
    v_lshrrev_b32 v{vT0}, 2, v{vN}
    v_lshl_add_u32 v{vT0}, v{vQ}, 2, v{vT0}
    v_mul_u32_u24 v{vTR}, 480, v{vT0}
    v_and_b32 v{vT1}, 3, v{vN}
    v_mul_u32_u24 v{vT1}, 40, v{vT1}
    v_add_u32 v{vTR}, v{vTR}, v{vT1}
    v_mov_b32 v{vONE}, 0x3f803f80
    v_mov_b32 v{vONE+1}, 0x3f803f80
    v_mov_b32 v{vONE+2}, 0x3f803f80
    v_mov_b32 v{vONE+3}, 0x3f803f80
    """)
    for i in range(8): a(f"v_mov_b32 v{vST+i}, 0")
    for i in range(60): a(f"v_mov_b32 v{ACC+i}, 0")
    for i in range(20):
        a.wait(vm=f"x{i}")
        a(f"v_mfma_f32_16x16x32_bf16 {vr(vST,4)}, {vr(vONE,4)}, {vr(XF+4*i,4)}, {vr(vST,4)}")
        a(f"v_mfma_f32_16x16x32_bf16 {vr(vST+4,4)}, {vr(XF+4*i,4)}, {vr(XF+4*i,4)}, {vr(vST+4,4)}")
    st("xlanded")
    a(f"""
    v_and_b32 v{vT0}, 3, v{vN}
    v_lshrrev_b32 v{vT1}, 2, v{vN}
    v_cmp_eq_u32 vcc, 1, v{vT0}
    v_cndmask_b32 v{vT2}, v{vST+4}, v{vST+5}, vcc
    v_cmp_eq_u32 vcc, 2, v{vT0}
    v_cndmask_b32 v{vT2}, v{vT2}, v{vST+6}, vcc
    v_cmp_eq_u32 vcc, 3, v{vT0}
    v_cndmask_b32 v{vT2}, v{vT2}, v{vST+7}, vcc
    v_cmp_eq_u32 vcc, v{vT1}, v{vQ}
    v_mov_b32 v{vT3}, 0
    v_cndmask_b32 v{vT2}, v{vT3}, v{vT2}, vcc
    v_mov_b32 v{vT3}, v{vT2}
    v_permlane16_swap_b32 v{vT2}, v{vT3}
    v_add_f32 v{vT2}, v{vT2}, v{vT3}
    v_mov_b32 v{vT3}, v{vT2}
    v_permlane32_swap_b32 v{vT2}, v{vT3}
    v_add_f32 v{vT2}, v{vT2}, v{vT3}
    v_mul_f32 v{vT0}, {fbits(1.0/640)}, v{vST}
    v_mul_f32 v{vT2}, {fbits(1.0/640)}, v{vT2}
    v_fma_f32 v{vT2}, -v{vT0}, v{vT0}, v{vT2}
    v_max_f32 v{vT2}, 0, v{vT2}
    v_add_f32 v{vT1}, {fbits(1e-5)}, v{vT2}
    v_rsq_f32 v{vST+8}, v{vT1}
    v_mul_f32 v{vT3}, v{vST+8}, v{vST+8}
    v_mul_f32 v{vST+9}, v{vT0}, v{vST+8}
    v_sub_f32 v{vST+9}, 0, v{vST+9}
    v_mul_f32 v{vT3}, v{vT3}, v{vT2}
    v_add_f32 v{vT3}, {fbits(1e-5)}, v{vT3}
    v_rsq_f32 v{vT3}, v{vT3}
    v_mul_f32 v{vST+10}, v{vST+8}, v{vT3}
    v_mul_f32 v{vST+11}, v{vST+9}, v{vT3}
    """)
    def normalize(reg, cpair, t):
        a(f"v_lshlrev_b32 v{t}, 16, v{reg}")
        a(f"v_and_b32 v{t+1}, 0xffff0000, v{reg}")
    def norm_list(regs, cpair):
        G = 4
        for b in range(0, len(regs), G):
            grp = regs[b:b+G]
            for k, r in enumerate(grp):
                a(f"v_lshlrev_b32 v{TMP+2*k}, 16, v{r}")
                a(f"v_and_b32 v{TMP+2*k+1}, 0xffff0000, v{r}")
            for k, r in enumerate(grp):
                a(f"v_pk_fma_f32 {vr(TMP+2*k,2)}, {vr(TMP+2*k,2)}, {vr(cpair,2)}, {vr(cpair,2)} op_sel:[0,0,1] op_sel_hi:[1,0,1]")
            for k, r in enumerate(grp):
                a(f"v_cvt_pk_bf16_f32 v{r}, v{TMP+2*k}, v{TMP+2*k+1}")
    norm_list([XF+i for i in range(80)], vST+8)
    a.wait(vm="hx")
    norm_list([HX+i for i in range(10)], vST+10)
    a(f"""
    s_mul_i32 s{sT1}, s{sW}, 2560
    s_add_u32 s{sT1}, s{sT1}, {HS}
    v_mul_u32_u24 v{vT0}, 160, v{vN}
    v_mul_u32_u24 v{vT1}, 40, v{vQ}
    v_add3_u32 v{vT0}, v{vT0}, v{vT1}, s{sT1}
    """)
    for i in range(5): a(f"ds_write_b64 v{vT0}, {vr(HX+2*i,2)} offset:{8*i}", lg="hs")
    a("s_waitcnt lgkmcnt(0)")
    st("ln_done")
    NF = 300; AHEAD = 6; RING = 8
    vTRs = TMP + 10
    def stage_enter(s):
        a.wait(vm=f"w{s}")
        a("s_barrier")
        a(f"v_add_u32 v{vTRs + (s&1)}, {(s % NSLOT)*STG}, v{vTR}")
        if 2 <= s and s + 8 < 20: dma_stage(s + 8)
        if s == 1:
            a(f"""
            s_and_b32 s{sT1}, s{sW}, 1
            s_mul_i32 s{sT2}, s{sT1}, 5120
            s_lshr_b32 s{sT0}, s{sW}, 1
            s_mul_i32 s{sT0}, s{sT0}, 24
            s_add_u32 s{sT2}, s{sT2}, s{sT0}
            s_add_u32 s{sT2}, s{sT2}, {HS}
            v_lshrrev_b32 v{vT0}, 2, v{vN}
            v_lshl_add_u32 v{vT0}, v{vQ}, 2, v{vT0}
            v_mul_u32_u24 v{vT0}, 160, v{vT0}
            v_and_b32 v{vT1}, 3, v{vN}
            v_mul_u32_u24 v{vT1}, 40, v{vT1}
            v_add3_u32 v{vT0}, v{vT0}, v{vT1}, s{sT2}
            """)
            for i in range(3):
                for hh in range(2):
                    a(f"ds_read_b64_tr_b16 {vr(TMP+16+4*i+2*hh,2)}, v{vT0} offset:{8*i + hh*2560}", lg="ht")
        if s == 2:
            a(f"""
            s_lshl_b32 s{sT0}, s{sG}, 6
            s_lshl_b32 s{sT1}, s{sRT}, 1
            s_add_u32 s{sT0}, s{sT0}, s{sT1}
            s_and_b32 s{sT1}, s{sW}, 1
            s_add_u32 s{sT0}, s{sT0}, s{sT1}
            s_mul_i32 s{sT0}, s{sT0}, 5
            s_lshr_b32 s{sT1}, s{sW}, 1
            s_mul_i32 s{sT2}, s{sT1}, 3
            s_add_u32 s{sT0}, s{sT0}, s{sT2}
            s_lshl_b32 s{sT0}, s{sT0}, 10
            s_add_u32 s{sT0}, s{sT0}, {HT_OFF}
            s_mul_i32 s{sT1}, s{sT1}, {BIG}
            v_lshlrev_b32 v{vT0}, 4, v{vLANE}
            v_add_u32 v{vT1}, s{sT1}, v{vT0}
            """)
            a(f"buffer_store_dwordx4 {vr(TMP+16,4)}, v{vT0}, {sr(SWS,4)}, s{sT0} offen", vm="st")
            a(f"buffer_store_dwordx4 {vr(TMP+20,4)}, v{vT0}, {sr(SWS,4)}, s{sT0} offen offset:1024", vm="st")
            a(f"buffer_store_dwordx4 {vr(TMP+24,4)}, v{vT1}, {sr(SWS,4)}, s{sT0} offen offset:2048", vm="st")
        if s == 12:
            a(f"""
            v_lshlrev_b32 v{vT0}, 4, v{vLANE}
            v_mov_b32 v{vT1}, {BIG}
            v_cmp_gt_u32 vcc, 50, v{vLANE}
            v_cndmask_b32 v{vT0}, v{vT1}, v{vT0}, vcc
            s_lshl_b32 s{sT0}, s{sG}, 2
            s_add_u32 s{sT0}, s{sT0}, s{sW}
            s_mul_i32 s{sT0}, s{sT0}, 800
            s_lshl_b32 m0, s{sW}, 10
            """)
            a(f"buffer_load_dwordx4 v{vT0}, {sr(SPHI,4)}, s{sT0} offen lds", vm="phi")
        if s == 1: st("stage1")
        if s == 10: st("stage10")
    def read_frag(F):
        s, idx = divmod(F, 15)
        if idx == 0: stage_enter(s)
        sec, t = divmod(idx, 5)
        b = WF + 4*(F % RING)
        for hh in range(2):
            a(f"ds_read_b64_tr_b16 {vr(b+2*hh,2)}, v{vTRs + (s&1)} offset:{hh*16*480 + sec*160 + t*8}", lg=f"f{F}")
    for F in range(AHEAD): read_frag(F)
    for F in range(NF):
        if F + AHEAD < NF: read_frag(F + AHEAD)
        s, idx = divmod(F, 15)
        a.wait(lg=f"f{F}")
        a(f"v_mfma_f32_16x16x32_bf16 {vr(ACC+4*idx,4)}, {vr(WF+4*(F%RING),4)}, {vr(XF+4*s,4)}, {vr(ACC+4*idx,4)}")
    st("gemm_done")
    a.wait(vm="phi")
    a("s_barrier")
    PA = XF
    QB = XF + 52
    KB_ = XF + 64
    a(f"""
    v_lshrrev_b32 v{vT0}, 2, v{vN}
    v_and_b32 v{vT1}, 3, v{vN}
    v_mul_u32_u24 v{vT0}, 40, v{vT0}
    v_lshl_add_u32 v{vT0}, v{vQ}, 10, v{vT0}
    v_cmp_eq_u32 vcc, v{vT1}, v{vQ}
    v_mov_b32 v{vT2}, 800
    """)
    for ec in range(5):
        a(f"v_add_u32 v{vT3}, {ec*160}, v{vT0}")
        a(f"v_cndmask_b32 v{TMP+ec}, v{vT2}, v{vT3}, vcc")
    for t in range(5):
        for ec in range(5):
            a(f"ds_read_b64_tr_b16 {vr(PA+10*t+2*ec,2)}, v{TMP+ec} offset:{8*t}", lg=f"pa{t}")
        if t == 2: a("s_waitcnt lgkmcnt(5)")
    for i in range(10):
        a(f"v_cvt_pk_bf16_f32 v{KB_+i}, v{ACC+20+2*i}, v{ACC+20+2*i+1}")
    for i in range(10):
        a(f"v_cvt_pk_bf16_f32 v{QB+i}, v{ACC+2*i}, v{ACC+2*i+1}")
    VB = WF
    for i in range(10):
        a(f"v_cvt_pk_bf16_f32 v{VB+i}, v{ACC+40+2*i}, v{ACC+40+2*i+1}")
    a(f"v_mov_b32 v{VB+10}, 0x3f80\nv_mov_b32 v{VB+11}, 0")
    a("s_waitcnt lgkmcnt(0)")
    PK = ACC + 20; PQ = ACC
    for (B, D) in ((KB_, PK), (QB, PQ)):
        for t in range(5):
            a(f"v_mfma_f32_16x16x32_bf16 {vr(D+4*t,4)}, {vr(PA+10*t,4)}, {vr(B,4)}, 0")
        for t in range(5):
            a(f"v_mfma_f32_16x16x32_bf16 {vr(D+4*t,4)}, {vr(PA+10*t+4,4)}, {vr(B+4,4)}, {vr(D+4*t,4)}")
        for t in range(5):
            a(f"v_mfma_f32_16x16x16_bf16 {vr(D+4*t,4)}, {vr(PA+10*t+8,2)}, {vr(B+8,2)}, {vr(D+4*t,4)}")
    REC = STG
    a(f"""
    s_mul_i32 s{sT0}, s{sW}, {16*144}
    s_add_u32 s{sT0}, s{sT0}, {REC}
    v_mul_u32_u24 v{vT0}, 9216, v{vQ}
    v_mul_u32_u24 v{vT1}, 144, v{vN}
    v_add3_u32 v{vT0}, v{vT0}, v{vT1}, s{sT0}
    """)
    for i in range(3):
        a(f"ds_write_b128 v{vT0}, {vr(VB+4*i,4)} offset:{80+16*i}", lg="rec")
    PHK = WF + 12
    softmax_dual(a, PK, TMP, vST, PHK, sL2E)
    for i in range(5):
        a(f"ds_write_b128 v{vT0}, {vr(PHK+4*i,4)} offset:{16*i}", lg="rec")
    st("softmax_done")
    for i in range(10):
        a(f"v_cvt_pk_bf16_f32 v{QB+i}, v{PQ+2*i}, v{PQ+2*i+1}")
    a(f"""
    s_mov_b32 s{sT1}, 81920
    v_mul_lo_u32 v{vT1}, v{vQ}, s{sT1}
    v_lshl_add_u32 v{vT1}, v{vN}, 3, v{vT1}
    s_mul_i32 s{sT0}, s{sG}, 327680
    s_lshl_b32 s{sT1}, s{sRT}, 2
    s_add_u32 s{sT1}, s{sT1}, s{sW}
    s_lshl_b32 s{sT1}, s{sT1}, 7
    s_add_u32 s{sT0}, s{sT0}, s{sT1}
    s_add_u32 s{sT0}, s{sT0}, {PQ_OFF}
    """)
    for t in range(5):
        a(f"buffer_store_dwordx2 {vr(QB+2*t,2)}, v{vT1}, {sr(SWS,4)}, s{sT0} offen", vm="st")
        if t < 4: a(f"s_add_u32 s{sT0}, s{sT0}, 16384")
    a("s_waitcnt lgkmcnt(0)\ns_barrier")
    a(f"""
    s_mul_i32 s{sT0}, s{sW}, 9216
    s_add_u32 s{sT0}, s{sT0}, {REC}
    v_lshrrev_b32 v{vT0}, 2, v{vN}
    v_lshl_add_u32 v{vT0}, v{vQ}, 2, v{vT0}
    v_mul_u32_u24 v{vT0}, 144, v{vT0}
    v_and_b32 v{vT2}, 3, v{vN}
    v_lshlrev_b32 v{vT2}, 3, v{vT2}
    v_add3_u32 v{vT0}, v{vT0}, v{vT2}, s{sT0}
    """)
    KA = XF; KBv = XF + 24; KD = ACC + 20
    for ks in range(2):
        for tm in range(3):
            for hh in range(2):
                a(f"ds_read_b64_tr_b16 {vr(KA+12*ks+4*tm+2*hh,2)}, v{vT0} offset:{(32*ks+16*hh)*144 + tm*32}", lg=f"kv{ks}")
        for tn in range(2):
            for hh in range(2):
                a(f"ds_read_b64_tr_b16 {vr(KBv+8*ks+4*tn+2*hh,2)}, v{vT0} offset:{(32*ks+16*hh)*144 + 80 + tn*32}", lg=f"kv{ks}")
    a(f"""
    v_mul_u32_u24 v{TMP}, 160, v{vN}
    v_lshl_add_u32 v{TMP}, v{vQ}, 4, v{TMP}
    v_mov_b32 v{vT2}, {BIG}
    v_cmp_gt_u32 vcc, 5, v{vN}
    v_cndmask_b32 v{TMP+1}, v{vT2}, v{TMP}, vcc
    v_cmp_gt_u32 vcc, 2, v{vQ}
    v_cndmask_b32 v{TMP+2}, v{vT2}, v{TMP}, vcc
    v_cndmask_b32 v{TMP+3}, v{vT2}, v{TMP+1}, vcc
    s_lshl_b32 s{sT0}, s{sG}, 2
    s_add_u32 s{sT0}, s{sT0}, s{sW}
    s_lshl_b32 s{sT0}, s{sT0}, 5
    s_add_u32 s{sT0}, s{sT0}, s{sRT}
    s_mul_i32 s{sT0}, s{sT0}, 3360
    s_add_u32 s{sT0}, s{sT0}, {KVP_OFF}
    """)
    for ks in range(2):
        a.wait(lg=f"kv{ks}")
        for tm in range(3):
            for tn in range(2):
                d = KD + 4*(tm*2+tn)
                c = "0" if ks == 0 else vr(d,4)
                a(f"v_mfma_f32_16x16x32_bf16 {vr(d,4)}, {vr(KA+12*ks+4*tm,4)}, {vr(KBv+8*ks+4*tn,4)}, {c}")
    for tm in range(3):
        for tn in range(2):
            d = KD + 4*(tm*2+tn)
            vo = TMP + (1 if tn else 0) + (2 if tm == 2 else 0)
            a(f"buffer_store_dwordx4 {vr(d,4)}, v{vo}, {sr(SWS,4)}, s{sT0} offen offset:{tn*2560 + tm*64}", vm="st")
    st("last_issue")
    st.finish(sW, 4)
    a("K0_end:\ns_endpgm")
    a.end_kernel(name, 256)

class Core:
    def __init__(self, a, D, RA, RB, vDMA, vFR, vTR, sLDS, mfma, wflag="", aflag=""):
        self.__dict__.update(locals())
    def issue(self, i, st):
        a = self.a; D = self.D; slot = i % D
        st["addr"]()
        if st["kind"] == "lds":
            a(f"s_add_u32 m0, s{self.sLDS}, {slot*4096}")
            for k in range(4):
                a(f"buffer_load_dwordx4 v{self.vDMA+k}, {sr(st['srdB'],4)}, s{st['offB']} offen offset:{1024*k} {self.wflag} lds", vm=f"s{i}")
        else:
            for k in range(4):
                a(f"buffer_load_dwordx4 {vr(self.RB+16*slot+4*k,4)}, v{self.vFR}, {sr(st['srdB'],4)}, s{st['offB']} offen offset:{1024*k}", vm=f"s{i}")
    def issueA(self, i, st, k):
        a = self.a; slot = i % self.D
        if k < 4:
            a(f"buffer_load_dwordx4 {vr(self.RA+20*slot+4*k,4)}, v{self.vFR}, {sr(st['srdA'],4)}, s{st['offA']} offen offset:{1024*k} {self.aflag}", vm=f"s{i}")
        else:
            a(f"buffer_load_dwordx4 {vr(self.RA+20*slot+16,4)}, v{self.vFR+1}, {sr(st['srdA'],4)}, s{st['offA']} offen {self.aflag}", vm=f"s{i}")
    def trreads(self, i):
        a = self.a; slot = i % self.D
        for u in range(4):
            for hh in range(2):
                a(f"ds_read_b64_tr_b16 {vr(self.RB+16*slot+4*u+2*hh,2)}, v{self.vTR+u} offset:{slot*4096 + hh*2048}", lg=f"t{i}")
    def run(self, steps, hook=None):
        a = self.a; D = self.D; n = len(steps)
        for i in range(min(D, n)):
            self.issue(i, steps[i])
            for k in range(5): self.issueA(i, steps[i], k)
        if hook: hook("after_prologue")
        self.st("issued")
        a.wait(vm="s0")
        self.st("first")
        if steps[0]["kind"] == "lds": self.trreads(0)
        for i in range(n):
            if i + 1 < n:
                a.wait(vm=f"s{i+1}")
                if steps[i+1]["kind"] == "lds": self.trreads(i + 1)
            a.wait(lg=f"t{i}")
            slot = i % D
            if i == n // 2: self.st("mid")
            nxt = steps[i + D] if i + D < n else None
            early = nxt is not None and nxt["kind"] == "lds"
            if early: self.issue(i + D, nxt)
            for t in range(5):
                for u in range(4):
                    self.mfma(t, u, self.RA + 20*slot + 4*t, self.RB + 16*slot + 4*u, first=(i == 0))
                if nxt is not None and early: self.issueA(i + D, nxt, t)
            if nxt is not None and not early:
                self.issue(i + D, nxt)
                for k in range(5): self.issueA(i + D, nxt, k)

def core_lane_setup(a, vLANE, vQ, vN, vT0, vT1, vDMA, vFR, vTR, rowstride, sT, sLDS):
    a(f"""
    v_lshrrev_b32 v{vT0}, 3, v{vLANE}
    v_and_b32 v{vT1}, 6, v{vT0}
    v_xor_b32 v{vT1}, v{vT1}, v{vLANE}
    v_and_b32 v{vT1}, 7, v{vT1}
    v_mul_u32_u24 v{vDMA}, {rowstride}, v{vT0}
    v_lshl_add_u32 v{vDMA}, v{vT1}, 4, v{vDMA}
    v_add_u32 v{vDMA+1}, {8*rowstride-1024}, v{vDMA}
    v_add_u32 v{vDMA+2}, {2*(8*rowstride-1024)}, v{vDMA}
    v_add_u32 v{vDMA+3}, {3*(8*rowstride-1024)}, v{vDMA}
    v_lshlrev_b32 v{vFR}, 4, v{vLANE}
    v_add_u32 v{vFR+1}, 4096, v{vFR}
    v_lshrrev_b32 v{vT0}, 2, v{vLANE}
    v_lshlrev_b32 v{vTR}, 7, v{vT0}
    v_and_b32 v{vT1}, 3, v{vLANE}
    v_lshl_add_u32 v{vTR}, v{vT1}, 3, v{vTR}
    v_add_u32 v{vTR}, s{sLDS}, v{vTR}
    v_lshrrev_b32 v{vT0}, 3, v{vLANE}
    v_and_b32 v{vT0}, 3, v{vT0}
    """)
    for u in (3, 2, 1, 0):
        a(f"v_xor_b32 v{vT1}, {u}, v{vT0}\nv_lshl_add_u32 v{vTR+u}, v{vT1}, 5, v{vTR}")

def gen_k1(a, opt):
    name = "k1_kernel"
    a.launch(name, 256, 512, 112*1024)
    a.begin_kernel(name)
    D = 4
    SW1, SHT, SB1, SWS, SWO = 8, 12, 16, 20, 40
    sW, sJ, sI, sFT, sDT, sT0, sT1, sT2, sSIG, sLDS, sOA, sOB, sBA, sBB, sL2E = 24, 25, 26, 27, 28, 29, 30, 31, 32, 33, 34, 35, 36, 37, 38
    vLANE, vQ, vN, vT0, vT1, vDMA, vFR, vTR, vBO = 1, 2, 3, 4, 5, 6, 10, 12, 16
    BIAS = 18
    RA = 32; RB = RA + 20*D
    NV = RB + 16*D
    st = Stamper(a, opt.get("stamps"), 1); opt["st1"] = st; st.start()
    load_kernargs(a)
    a(f"""
    v_and_b32 v{vLANE}, 63, v0
    v_lshrrev_b32 v{vT0}, 6, v0
    v_lshrrev_b32 v{vQ}, 4, v{vLANE}
    v_readfirstlane_b32 s{sW}, v{vT0}
    v_and_b32 v{vN}, 15, v{vLANE}
    s_waitcnt lgkmcnt(0)
    """)
    ticket(a, opt, "K1", sW, 112*1024-64, "K1_end")
    st("ticket")
    a(f"""
    s_and_b32 s{sJ}, s2, 7
    s_lshr_b32 s{sI}, s2, 3
    s_mov_b32 s{sL2E}, {fbits(LOG2E)}
    s_waitcnt lgkmcnt(0)
    """)
    srd(a, SW1, P_W1, 2048*3456)
    srd(a, SB1, P_B1, 1728*2)
    srd(a, SWS, P_WS, WS_USED)
    srd(a, SWO, P_WO, 640*1280)
    a(f"s_cmp_eq_u32 s{sI}, 31\ns_cbranch_scc1 K1_wot\ns_cmp_ge_u32 s{sI}, 27\ns_cbranch_scc1 K1_o")
    a(f"s_cmp_ge_u32 s{sW}, 4\ns_cbranch_scc1 K1_end")
    a(f"""
    s_mul_i32 s{sT0}, s{sJ}, 27
    s_add_u32 s{sT0}, s{sT0}, s{sI}
    s_lshr_b32 s{sFT}, s{sT0}, 3
    s_and_b32 s{sDT}, s{sT0}, 7
    s_mul_i32 s{sLDS}, s{sW}, 20480
    s_mul_i32 s{sSIG}, s{sFT}, 5
    s_lshl_b32 s{sT0}, s{sDT}, 1
    s_add_u32 s{sSIG}, s{sSIG}, s{sT0}
    s_and_b32 s{sSIG}, s{sSIG}, 15
    s_mul_i32 s{sBB}, s{sW}, {16*32*3456}
    s_lshl_b32 s{sT0}, s{sFT}, 7
    s_add_u32 s{sBB}, s{sBB}, s{sT0}
    s_lshl_b32 s{sT0}, s{sDT}, 2
    s_add_u32 s{sT0}, s{sT0}, s{sW}
    s_mul_i32 s{sBA}, s{sT0}, {16*5120}
    s_add_u32 s{sBA}, s{sBA}, {HT_OFF}
    """)
    if not opt.get("rot", 1): a(f"s_mov_b32 s{sSIG}, 0")
    core_lane_setup(a, vLANE, vQ, vN, vT0, vT1, vDMA, vFR, vTR, 3456, sT0, sLDS)
    def addr():
        a(f"""
        s_mul_i32 s{sOB}, s{sSIG}, {32*3456}
        s_add_u32 s{sOB}, s{sOB}, s{sBB}
        s_mul_i32 s{sOA}, s{sSIG}, 5120
        s_add_u32 s{sOA}, s{sOA}, s{sBA}
        s_add_u32 s{sSIG}, s{sSIG}, 1
        s_and_b32 s{sSIG}, s{sSIG}, 15
        """)
    def tile_idx(tm, t): return ((tm >> 1)*5 + t)*2 + (tm & 1)
    def mfma(t, u, ra, rb, first):
        d = 4*tile_idx(u, t)
        a(f"v_mfma_f32_16x16x32_bf16 {ar(d,4)}, {vr(rb,4)}, {vr(ra,4)}, {'0' if first else ar(d,4)}")
    steps = [dict(kind="lds", addr=addr, srdA=SWS, offA=sOA, srdB=SW1, offB=sOB) for _ in range(16)]
    a(f"v_lshlrev_b32 v{vBO}, 3, v{vQ}")
    a(f"s_lshl_b32 s{sT0}, s{sFT}, 7\ns_add_u32 s{sT2}, s{sT0}, 64\ns_cmp_ge_u32 s{sW}, 1\ns_cselect_b32 s{sT1}, s{sT2}, s{sT0}")
    for i, so in enumerate((sT0, sT1, sT2)):
        for hh in range(2):
            a(f"buffer_load_dwordx2 {vr(BIAS+4*i+2*hh,2)}, v{vBO}, {sr(SB1,4)}, s{so} offen offset:{32*hh}", vm="bias")
    core = Core(a, D, RA, RB, vDMA, vFR, vTR, sLDS, mfma, wflag=opt.get("k1_wflag", ""), aflag=opt.get("k1_aflag", ""))
    core.st = st
    core.run(steps)
    st("gemm_done")
    a(f"v_add_u32 v{vT0}, s{sLDS}, v{vFR}")
    for i in range(20): a(f"ds_write_b128 v{vT0}, {ar(4*i,4)} offset:{1024*i}", lg="red")
    a(f"s_lshl_b32 s{sT0}, s{sW}, 11\nv_add_u32 v{vT0}, s{sT0}, v{vFR}\nv_add_u32 v{vT1}, 40960, v{vT0}")
    a(f"""
    s_mul_i32 s{sT0}, s{sDT}, 276480
    s_mul_i32 s{sT1}, s{sFT}, 10240
    s_add_u32 s{sT0}, s{sT0}, s{sT1}
    s_lshl_b32 s{sT1}, s{sW}, 10
    s_add_u32 s{sT0}, s{sT0}, s{sT1}
    s_add_u32 s{sT0}, s{sT0}, {U_OFF}
    s_mov_b32 s{sOA}, {fbits(-2*0.7978845608028654*LOG2E)}
    s_mov_b32 s{sOB}, {fbits(-2*0.7978845608028654*0.044715*LOG2E)}
    """)
    a("s_waitcnt lgkmcnt(0)\ns_barrier")
    st("red_barrier")
    R = RA
    def rd(i):
        for reg in range(4):
            for hh in range(2):
                a(f"ds_read_b128 {vr(R+32*i+8*reg+4*hh,4)}, v{vT0 if reg < 2 else vT1} offset:{(reg&1)*20480 + i*8192 + hh*1024}", lg=f"r{i}")
    def fin(i):
        b = R + 32*i; T = 144
        a.wait(lg=f"r{i}")
        for k in range(8): a(f"v_add_f32 v{b+k}, v{b+k}, v{b+8+k}")
        for k in range(8): a(f"v_add_f32 v{b+16+k}, v{b+16+k}, v{b+24+k}")
        for k in range(4):
            a(f"v_lshlrev_b32 v{T+2*k}, 16, v{BIAS+4*i+k}\nv_and_b32 v{T+2*k+1}, 0xffff0000, v{BIAS+4*i+k}")
        for k in range(8): a(f"v_add_f32 v{b+k}, v{b+k}, v{b+16+k}")
        for k in range(8): a(f"v_add_f32 v{b+k}, v{b+k}, v{T+k}")
        a(f"v_mov_b32 v{T+16}, s{sOA}")
        for k in range(8): a(f"v_mul_f32 v{T+k}, v{b+k}, v{b+k}")
        for k in range(8): a(f"v_fma_f32 v{T+k}, v{T+k}, s{sOB}, v{T+16}")
        for k in range(8): a(f"v_mul_f32 v{T+k}, v{T+k}, v{b+k}")
        for k in range(8): a(f"v_exp_f32 v{T+k}, v{T+k}")
        for k in range(8): a(f"v_add_f32 v{T+k}, 1.0, v{T+k}")
        for k in range(8): a(f"v_rcp_f32 v{T+k}, v{T+k}")
        for k in range(8): a(f"v_mul_f32 v{b+k}, v{b+k}, v{T+k}")
        for k in range(4): a(f"v_cvt_pk_bf16_f32 v{b+8+k}, v{b+2*k}, v{b+2*k+1}")
        a(f"buffer_store_dwordx4 {vr(b+8,4)}, v{vFR}, {sr(SWS,4)}, s{sT0} offen", vm="st")
        a(f"s_add_u32 s{sT0}, s{sT0}, 4096")
    rd(0); rd(1)
    a.wait(vm="bias")
    fin(0);
    a(f"s_cmp_ge_u32 s{sW}, 2\ns_cbranch_scc1 K1_u_two")
    save = (list(a.vmq), list(a.lgq))
    rd(2); fin(1); fin(2)
    st("last_issue"); st.finish(sW, 8)
    a("s_endpgm")
    a("K1_u_two:")
    a.vmq, a.lgq = save
    a.fence(4)
    fin(1)
    st("last_issue"); st.finish(sW, 8)
    a("s_endpgm")
    a("K1_o:")
    a.hist = []; a.vmq = []; a.lgq = []
    sH = sFT
    PQR = 20
    PART = 60
    PHI = 124
    P = 124; E = 60; T6 = 10; OUTP = 144
    a(f"""
    s_lshl_b32 s{sH}, s{sJ}, 2
    s_add_u32 s{sH}, s{sH}, s{sI}
    s_sub_u32 s{sH}, s{sH}, 27
    v_lshlrev_b32 v{vT0}, 3, v{vLANE}
    s_mul_i32 s{sT0}, s{sH}, 81920
    s_lshl_b32 s{sT1}, s{sW}, 11
    s_add_u32 s{sT0}, s{sT0}, s{sT1}
    s_add_u32 s{sT0}, s{sT0}, {PQ_OFF}
    """)
    for c in range(5):
        for i in range(4):
            a(f"buffer_load_dwordx2 {vr(PQR+10*i+2*c,2)}, v{vT0}, {sr(SWS,4)}, s{sT0} offen offset:{512*i}", vm="pq")
        if c < 4: a(f"s_add_u32 s{sT0}, s{sT0}, 16384")
    a(f"""
    v_and_b32 v{vT1}, 255, v0
    v_lshlrev_b32 v{vT1}, 4, v{vT1}
    s_lshr_b32 s{sT1}, s{sW}, 2
    s_lshl_b32 s{sT1}, s{sT1}, 4
    s_lshl_b32 s{sT0}, s{sH}, 5
    s_add_u32 s{sT0}, s{sT0}, s{sT1}
    s_mul_i32 s{sT0}, s{sT0}, 3360
    s_add_u32 s{sT0}, s{sT0}, {KVP_OFF}
    """)
    for j in range(16):
        a(f"buffer_load_dwordx4 {vr(PART+4*j,4)}, v{vT1}, {sr(SWS,4)}, s{sT0} offen", vm="part")
        if j < 15: a(f"s_add_u32 s{sT0}, s{sT0}, 3360")
    st("issued")
    a.wait(vm="part")
    st("first")
    for step in (8, 4, 2, 1):
        for j in range(step):
            for k in range(4):
                a(f"v_add_f32 v{PART+4*j+k}, v{PART+4*j+k}, v{PART+4*(j+step)+k}")
    a(f"s_lshr_b32 s{sT1}, s{sW}, 2\ns_lshl_b32 s{sT1}, s{sT1}, 12\nv_add_u32 v{vT0}, s{sT1}, v{vT1}")
    a(f"ds_write_b128 v{vT0}, {vr(PART,4)}")
    a("s_waitcnt lgkmcnt(0)\ns_barrier")
    a(f"ds_read_b128 {vr(PART,4)}, v{vT1}\nds_read_b128 {vr(PART+4,4)}, v{vT1} offset:4096")
    a("s_waitcnt lgkmcnt(0)")
    for k in range(4): a(f"v_add_f32 v{PART+k}, v{PART+k}, v{PART+4+k}")
    a(f"v_cvt_pk_bf16_f32 v{PART+8}, v{PART}, v{PART+1}\nv_cvt_pk_bf16_f32 v{PART+9}, v{PART+2}, v{PART+3}")
    a(f"""
    v_mov_b32 v{PART+10}, 0
    v_cmp_gt_u32 vcc, {210*16}, v{vT1}
    v_cndmask_b32 v{PART+8}, v{PART+10}, v{PART+8}, vcc
    v_cndmask_b32 v{PART+9}, v{PART+10}, v{PART+9}, vcc
    v_lshrrev_b32 v{vT0}, 1, v{vT1}
    ds_write_b64 v{vT0}, {vr(PART+8,2)} offset:8192
    """)
    st("mid")
    for i in range(4):
        for k in range(10):
            a(f"v_lshlrev_b32 v{P+2*k}, 16, v{PQR+10*i+k}\nv_and_b32 v{P+2*k+1}, 0xffff0000, v{PQR+10*i+k}")
        softmax_dual(a, P, E+12, T6, OUTP, sL2E)
        for k in range(20): a(f"v_accvgpr_write_b32 a{20*i+k}, v{OUTP+k}")
    a("s_waitcnt lgkmcnt(0)\ns_barrier")
    st("gemm_done")
    AD = 10
    a(f"""
    v_and_b32 v{vT0}, 3, v{vN}
    v_mul_u32_u24 v{vT0}, 80, v{vT0}
    v_lshrrev_b32 v{vT1}, 2, v{vN}
    v_cmp_eq_u32 vcc, v{vT1}, v{vQ}
    v_mov_b32 v{vT1}, {8192+1680}
    """)
    for t in range(5):
        a(f"v_add_u32 v{vBO}, {8192+320*t}, v{vT0}\nv_cndmask_b32 v{AD+t}, v{vT1}, v{vBO}, vcc")
    a(f"v_mov_b32 v{vBO}, {8192+1600}\nv_cndmask_b32 v{AD+5}, v{vT1}, v{vBO}, vcc")
    AF = 60
    CC = 100
    RD = 132
    OB = 20
    order = [5, 0, 1, 2, 3, 4]
    def rdA(n):
        t = order[n]
        for c in range(5): a(f"ds_read_b128 {vr(AF+20*(n&1)+4*c,4)}, v{AD+t} offset:{16*c}", lg=f"A{n}")
    def post(n):
        t = order[n]; cb = CC + 16*(n & 1)
        if t == 5:
            for i in range(4): a(f"v_add_f32 v{RD+i}, {fbits(1e-6)}, v{cb+4*i}")
            for i in range(4): a(f"v_rcp_f32 v{RD+i}, v{RD+i}")
        else:
            for i in range(4):
                for k in range(4): a(f"v_mul_f32 v{cb+4*i+k}, v{cb+4*i+k}, v{RD+i}")
            for i in range(4):
                for k in range(2): a(f"v_cvt_pk_bf16_f32 v{OB+10*i+2*t+k}, v{cb+4*i+2*k}, v{cb+4*i+2*k+1}")
    rdA(0)
    for n in range(6):
        if n + 1 < 6: rdA(n + 1)
        a.wait(lg=f"A{n}")
        cb = CC + 16*(n & 1)
        for c in range(5):
            for i in range(4):
                a(f"v_mfma_f32_16x16x32_bf16 {vr(cb+4*i,4)}, {vr(AF+20*(n&1)+4*c,4)}, {ar(20*i+4*c,4)}, {'0' if c == 0 else vr(cb+4*i,4)}")
            if c == 2 and n > 0: post(n - 1)
    post(5)
    a(f"""
    v_lshlrev_b32 v{vT0}, 10, v{vQ}
    v_lshl_add_u32 v{vT0}, v{vN}, 4, v{vT0}
    s_mul_i32 s{sT0}, s{sW}, {4*81920}
    s_add_u32 s{sT0}, s{sT0}, {O_OFF}
    s_lshr_b32 s{sT1}, s{sH}, 2
    s_lshl_b32 s{sT1}, s{sT1}, 12
    s_and_b32 s{sT2}, s{sH}, 3
    s_lshl_b32 s{sT2}, s{sT2}, 8
    s_add_u32 s{sOA}, s{sT1}, s{sT2}
    s_add_u32 s{sOA}, s{sOA}, s{sT0}
    s_lshr_b32 s{sT1}, s{sH}, 3
    s_lshl_b32 s{sT1}, s{sT1}, 12
    s_lshr_b32 s{sT2}, s{sH}, 1
    s_and_b32 s{sT2}, s{sT2}, 3
    s_lshl_b32 s{sT2}, s{sT2}, 8
    s_add_u32 s{sOB}, s{sT1}, s{sT2}
    s_and_b32 s{sT2}, s{sH}, 1
    s_lshl_b32 s{sT2}, s{sT2}, 3
    s_add_u32 s{sOB}, s{sOB}, s{sT2}
    s_add_u32 s{sOB}, s{sOB}, s{sT0}
    s_add_u32 s{sOB}, s{sOB}, {16*4096}
    """)
    for i in range(4):
        a(f"buffer_store_dwordx4 {vr(OB+10*i,4)}, v{vT0}, {sr(SWS,4)}, s{sOA} offen")
        a(f"s_add_u32 s{sT1}, s{sOA}, {8*4096}")
        a(f"buffer_store_dwordx4 {vr(OB+10*i+4,4)}, v{vT0}, {sr(SWS,4)}, s{sT1} offen")
        a(f"buffer_store_dwordx2 {vr(OB+10*i+8,2)}, v{vT0}, {sr(SWS,4)}, s{sOB} offen")
        if i < 3: a(f"s_add_u32 s{sOA}, s{sOA}, 81920\ns_add_u32 s{sOB}, s{sOB}, 81920")
    st("last_issue"); st.finish(sW, 8)
    a("s_endpgm")
    a("K1_wot:")
    a.hist = []; a.vmq = []; a.lgq = []
    a(f"""
    v_mul_u32_u24 v{vT0}, 26, v{vLANE}
    v_lshrrev_b32 v{vT0}, 8, v{vT0}
    v_mul_u32_u24 v{vT1}, 1120, v{vT0}
    v_lshl_add_u32 v{vT1}, v{vLANE}, 4, v{vT1}
    s_mov_b32 s{sOA}, -1
    s_mov_b32 s{sOA+1}, 0x0fffffff
    s_mul_i32 s{sT0}, s{sW}, {6*1280}
    s_mul_i32 s{sT1}, s{sJ}, 160
    s_add_u32 s{sT0}, s{sT0}, s{sT1}
    s_mul_i32 s{sT1}, s{sW}, 960
    s_mov_b64 exec, {sr(sOA,2)}
    """)
    for i in range(14):
        a(f"s_add_u32 m0, s{sT1}, {i*8*960}")
        a(f"buffer_load_dwordx4 v{vT1}, {sr(SWO,4)}, s{sT0} offen lds")
        if i < 13: a(f"s_add_u32 s{sT0}, s{sT0}, {48*1280}")
    a(f"""
    s_mov_b64 exec, -1
    v_lshrrev_b32 v{vT0}, 2, v{vN}
    v_and_b32 v{vT1}, 3, v{vN}
    v_mul_u32_u24 v{vT1}, 40, v{vT1}
    v_mul_u32_u24 v{vT0}, 160, v{vT0}
    v_add_u32 v{vT0}, v{vT0}, v{vT1}
    v_mul_u32_u24 v{vT1}, 3200, v{vQ}
    s_mul_i32 s{sT0}, s{sW}, 12800
    v_add3_u32 v{vDMA}, v{vT0}, v{vT1}, s{sT0}
    v_add_u32 v{vDMA+1}, v{vDMA}, v{vT1}
    v_add_u32 v{vDMA+1}, s{sT0}, v{vDMA+1}
    v_lshlrev_b32 v{vFR}, 4, v{vLANE}
    v_add_u32 v{vFR+1}, 4096, v{vFR}
    s_mul_i32 s{sT0}, s{sJ}, 102400
    s_mul_i32 s{sT1}, s{sW}, 5120
    s_add_u32 s{sT0}, s{sT0}, s{sT1}
    s_add_u32 s{sT0}, s{sT0}, {WOT_OFF}
    s_waitcnt vmcnt(0)
    s_barrier
    """)
    def wot(reg, addr, base, hs):
        for t in range(5):
            for hh in range(2):
                a(f"ds_read_b64_tr_b16 {vr(reg+4*t+2*hh,2)}, v{addr} offset:{base + hh*hs + 8*t}")
        a("s_waitcnt lgkmcnt(0)")
        for t in range(5):
            if t < 4: a(f"buffer_store_dwordx4 {vr(reg+4*t,4)}, v{vFR}, {sr(SWS,4)}, s{sT0} offen offset:{1024*t}")
            else: a(f"buffer_store_dwordx4 {vr(reg+4*t,4)}, v{vFR+1}, {sr(SWS,4)}, s{sT0} offen")
        a(f"s_add_u32 s{sT0}, s{sT0}, {8*5120}")
    wot(32, vDMA, 0, 640)
    wot(52, vDMA, 1280, 640)
    a(f"s_cmp_ge_u32 s{sW}, 4\ns_cbranch_scc1 K1_end")
    wot(72, vDMA+1, 16*160, 3200)
    a("K1_end:\ns_endpgm")
    a.end_kernel(name, NV + 80, accum=NV)

def gen_k2(a, opt):
    name = "k2_kernel"
    a.launch(name, 256, 256, 81920+64)
    a.begin_kernel(name)
    D = 5
    SW2, SU, SB2, SWS, SX, SOUT = 8, 12, 16, 20, 40, 44
    sW, sJ, sI, sST, sDT, sT0, sT1, sT2, sSIG, sLDS, sOA, sOB, sBA, sBB, sSG2, sBA2, sBB2, sXO = 24, 25, 26, 27, 28, 29, 30, 31, 32, 33, 34, 35, 36, 37, 38, 39, 48, 49
    vLANE, vQ, vN, vT0, vT1, vDMA, vFR, vTR, vXO, vB2 = 1, 2, 3, 4, 5, 6, 10, 12, 16, 17
    XR = 18
    RA = 32; RB = RA + 20*D; NV = RB + 16*D
    st = Stamper(a, opt.get("stamps"), 2); opt["st2"] = st; st.start()
    load_kernargs(a)
    a(f"""
    v_and_b32 v{vLANE}, 63, v0
    v_lshrrev_b32 v{vT0}, 6, v0
    v_lshrrev_b32 v{vQ}, 4, v{vLANE}
    v_readfirstlane_b32 s{sW}, v{vT0}
    v_and_b32 v{vN}, 15, v{vLANE}
    s_waitcnt lgkmcnt(0)
    """)
    ticket(a, opt, "K2", sW, 81920, "K2_end")
    st("ticket")
    a(f"""
    s_and_b32 s{sJ}, s2, 7
    s_lshr_b32 s{sI}, s2, 3
    s_lshr_b32 s{sT2}, s{sI}, 3
    s_lshl_b32 s{sST}, s{sJ}, 2
    s_add_u32 s{sST}, s{sST}, s{sT2}
    s_and_b32 s{sDT}, s{sI}, 7
    s_mul_i32 s{sLDS}, s{sW}, 20480
    s_mul_i32 s{sSIG}, s{sDT}, 7
    s_lshr_b32 s{sSIG}, s{sSIG}, 2
    s_lshl_b32 s{sT0}, s{sT2}, 2
    s_add_u32 s{sSIG}, s{sSIG}, s{sT0}
    s_sub_u32 s{sT0}, s{sSIG}, 14
    s_cmp_ge_u32 s{sSIG}, 14
    s_cselect_b32 s{sSIG}, s{sT0}, s{sSIG}
    s_add_u32 s{sSG2}, s{sDT}, s{sT2}
    s_sub_u32 s{sT0}, s{sSG2}, 5
    s_cmp_ge_u32 s{sSG2}, 5
    s_cselect_b32 s{sSG2}, s{sT0}, s{sSG2}
    s_sub_u32 s{sT0}, s{sSG2}, 5
    s_cmp_ge_u32 s{sSG2}, 5
    s_cselect_b32 s{sSG2}, s{sT0}, s{sSG2}
    ; bases
    s_mul_i32 s{sBB}, s{sW}, {14*32*4096}
    s_lshl_b32 s{sT0}, s{sST}, 7
    s_add_u32 s{sBB}, s{sBB}, s{sT0}
    s_mul_i32 s{sBA}, s{sW}, {14*5120}
    s_mul_i32 s{sBA2}, s{sDT}, 102400
    s_mul_i32 s{sT0}, s{sW}, {5*5120}
    s_add_u32 s{sBA2}, s{sBA2}, s{sT0}
    s_add_u32 s{sBA2}, s{sBA2}, {WOT_OFF}
    s_mul_i32 s{sBB2}, s{sST}, 81920
    s_mul_i32 s{sT0}, s{sW}, {5*4096}
    s_add_u32 s{sBB2}, s{sBB2}, s{sT0}
    s_add_u32 s{sBB2}, s{sBB2}, {O_OFF}
    s_mul_i32 s{sT1}, s{sDT}, 276480
    s_add_u32 s{sT1}, s{sT1}, {U_OFF}
    s_waitcnt lgkmcnt(0)
    """)
    if not opt.get("rot", 1): a(f"s_mov_b32 s{sSIG}, 0\ns_mov_b32 s{sSG2}, 0")
    srd(a, SW2, P_W2, 1728*4096)
    srd(a, SU, P_WS, 276480, off=f"s{sT1}")
    srd(a, SB2, P_B2, 4096)
    srd(a, SWS, P_WS, WS_USED)
    srd(a, SX, P_X, 2048*1280)
    srd(a, SOUT, P_OUT, 2048*1280)
    core_lane_setup(a, vLANE, vQ, vN, vT0, vT1, vDMA, vFR, vTR, 4096, sT0, sLDS)
    def addr1():
        a(f"""
        s_lshl_b32 s{sOB}, s{sSIG}, 17
        s_add_u32 s{sOB}, s{sOB}, s{sBB}
        s_mul_i32 s{sOA}, s{sSIG}, 5120
        s_add_u32 s{sOA}, s{sOA}, s{sBA}
        s_add_u32 s{sSIG}, s{sSIG}, 1
        s_cmp_eq_u32 s{sSIG}, 14
        s_cselect_b32 s{sSIG}, 0, s{sSIG}
        """)
    def addr2():
        a(f"""
        s_lshl_b32 s{sOB}, s{sSG2}, 12
        s_add_u32 s{sOB}, s{sOB}, s{sBB2}
        s_mul_i32 s{sOA}, s{sSG2}, 5120
        s_add_u32 s{sOA}, s{sOA}, s{sBA2}
        s_add_u32 s{sSG2}, s{sSG2}, 1
        s_cmp_eq_u32 s{sSG2}, 5
        s_cselect_b32 s{sSG2}, 0, s{sSG2}
        """)
    def mfma(t, u, ra, rb, first):
        d = 4*(t*4 + u)
        a(f"v_mfma_f32_16x16x32_bf16 {ar(d,4)}, {vr(ra,4)}, {vr(rb,4)}, {'0' if first else ar(d,4)}")
    steps = [dict(kind="lds", addr=addr1, srdA=SU, offA=sOA, srdB=SW2, offB=sOB) for _ in range(14)]
    steps += [dict(kind="dir", addr=addr2, srdA=SWS, offA=sOA, srdB=SWS, offB=sOB) for _ in range(5)]
    def hook(_):
        a(f"""
        v_mul_u32_u24 v{vXO}, 1280, v{vN}
        v_mul_u32_u24 v{vT0}, 40, v{vQ}
        v_add_u32 v{vXO}, v{vXO}, v{vT0}
        s_lshl_b32 s{sT0}, s{sST}, 2
        s_add_u32 s{sT0}, s{sT0}, s{sW}
        s_mul_i32 s{sXO}, s{sT0}, {16*1280}
        s_mul_i32 s{sT1}, s{sDT}, 160
        s_add_u32 s{sXO}, s{sXO}, s{sT1}
        s_lshl_b32 s{sT0}, s{sT0}, 5
        v_lshlrev_b32 v{vT0}, 1, v{vN}
        """)
        a(f"buffer_load_dwordx4 {vr(XR,4)}, v{vXO}, {sr(SX,4)}, s{sXO} offen", vm="xr")
        a(f"buffer_load_dwordx4 {vr(XR+4,4)}, v{vXO}, {sr(SX,4)}, s{sXO} offen offset:16", vm="xr")
        a(f"buffer_load_dwordx2 {vr(XR+8,2)}, v{vXO}, {sr(SX,4)}, s{sXO} offen offset:32", vm="xr")
        a(f"buffer_load_ushort v{vB2}, v{vT0}, {sr(SB2,4)}, s{sT0} offen", vm="xr")
    core = Core(a, D, RA, RB, vDMA, vFR, vTR, sLDS, mfma, wflag=opt.get("k2_wflag", ""), aflag=opt.get("k2_aflag", ""))
    core.st = st
    core.run(steps, hook)
    st("gemm_done")
    a(f"v_add_u32 v{vT0}, s{sLDS}, v{vFR}")
    for i in range(20): a(f"ds_write_b128 v{vT0}, {ar(4*i,4)} offset:{1024*i}", lg="red")
    a(f"s_lshl_b32 s{sT0}, s{sW}, 10\nv_add_u32 v{vT0}, s{sT0}, v{vFR}\nv_add_u32 v{vT1}, 40960, v{vT0}")
    XE = RB
    a(f"v_lshlrev_b32 v{vB2}, 16, v{vB2}")
    for k in range(10):
        a(f"v_lshlrev_b32 v{XE+2*k}, 16, v{XR+k}\nv_and_b32 v{XE+2*k+1}, 0xffff0000, v{XR+k}")
    for k in range(20): a(f"v_add_f32 v{XE+k}, v{XE+k}, v{vB2}")
    a("s_waitcnt lgkmcnt(0)\ns_barrier")
    st("red_barrier")
    R = RA
    for t in range(5):
        for reg in range(4):
            a(f"ds_read_b128 {vr(R+16*t+4*reg,4)}, v{vT0 if reg < 2 else vT1} offset:{(reg&1)*20480 + t*4096}", lg=f"r{t}")
        if t == 2: a.wait(lg="r0")
    for t in range(5):
        a.wait(lg=f"r{t}")
        b = R + 16*t
        for k in range(4): a(f"v_add_f32 v{b+k}, v{b+k}, v{b+4+k}")
        for k in range(4): a(f"v_add_f32 v{b+8+k}, v{b+8+k}, v{b+12+k}")
        for k in range(4): a(f"v_add_f32 v{b+k}, v{b+k}, v{XE+4*t+k}")
        for k in range(4): a(f"v_add_f32 v{b+k}, v{b+k}, v{b+8+k}")
        for k in range(2): a(f"v_cvt_pk_bf16_f32 v{XR+2*t+k}, v{b+2*k}, v{b+2*k+1}")
    a(f"buffer_store_dwordx4 {vr(XR,4)}, v{vXO}, {sr(SOUT,4)}, s{sXO} offen")
    a(f"buffer_store_dwordx4 {vr(XR+4,4)}, v{vXO}, {sr(SOUT,4)}, s{sXO} offen offset:16")
    a(f"buffer_store_dwordx2 {vr(XR+8,2)}, v{vXO}, {sr(SOUT,4)}, s{sXO} offen offset:32")
    st("last_issue"); st.finish(sW, 4)
    a("K2_end:\ns_endpgm")
    a.end_kernel(name, NV + 80, accum=NV)

def build(opt=None):
    opt = opt or {}
    a = Asm()
    gen_k0(a, opt); gen_k1(a, opt); gen_k2(a, opt)
    hdr = "LN + hedgehog linear attention + mixer token MLP, three launches (generated by dev/gen.py)"
    return a.text(hdr), a

if __name__ == "__main__":
    out = sys.argv[1] if len(sys.argv) > 1 else "parallel_sum__linear_kernel_hedgehog__mixer_token_mlp__prompt.s"
    txt, a = build()
    open(out, "w").write(txt)
    print("wrote", out, "instrs", a.ninstr, "nops", a.nops, "bytes", len(txt))
```
